```python
import torch

def _softmax(x, axis=-1):
    return torch.softmax(x, dim=axis)
def _gelu(x):
    return torch.nn.functional.gelu(x, approximate="tanh")
def _silu(x):
    return torch.nn.functional.silu(x)
def _sigmoid(x):
    return torch.sigmoid(x)
def _layernorm(x, axis=-1, eps=1e-5):
    m = x.mean(dim=axis, keepdim=True)
    v = x.var(dim=axis, keepdim=True, unbiased=False)
    return (x - m) / torch.sqrt(v + eps)
def _scatter_add(tgt, idx, src, axis=0):
    return tgt.clone().index_add_(axis, idx, src)
def _segment_sum(src, seg, n):
    out = torch.zeros((n,) + src.shape[1:], dtype=src.dtype)
    return out.index_add_(0, seg, src)
def _pad(x, pw):
    flat = tuple(v for pair in reversed(pw) for v in pair)
    return torch.nn.functional.pad(x, flat)

kernel_name = 'standalone__gqa_block_cached__decode'

def setup_inputs():

    _w = (lambda a: (lambda t: t.to(torch.bfloat16) if t.is_floating_point() else t)(torch.as_tensor(a)))
    B, Sq, D = 2, 1, 1024
    Hq, Hkv, Sk, Dh = 32, 4, 32768, 128
    assert Hq % Hkv == 0, (Hq, Hkv)
    return {
        "x": _w((lambda *s: torch.randn(*s, dtype=torch.bfloat16) * 0.8)(B, Sq, D)),
        "k_cache": _w((lambda *s: torch.randn(*s, dtype=torch.bfloat16) * 0.8)(B, Hkv, Sk, Dh)),
        "v_cache": _w((lambda *s: torch.randn(*s, dtype=torch.bfloat16) * 0.05)(B, Hkv, Sk, Dh)),
        "wq": _w((lambda *s: torch.randn(*s, dtype=torch.bfloat16) * 0.8)(D, Hq * Dh) * (D ** -0.5)),
        "wo": _w((lambda *s: torch.randn(*s, dtype=torch.bfloat16) * 0.05)(Hq * Dh, D) * ((Hq * Dh) ** -0.5)),
    }

def reference(x, k_cache, v_cache, wq, wo):
    B, Sq, D = x.shape
    Hq, Dh = 32, 128
    Hkv = k_cache.shape[1]
    rep = Hq // Hkv
    q = (lambda x, *d: x.permute(*d))((x @ wq).reshape(B, Sq, Hq, Dh), 0, 2, 1, 3)
    k = (lambda x, n, axis: torch.repeat_interleave(x, n, dim=axis))(k_cache, rep, axis=1)
    v = (lambda x, n, axis: torch.repeat_interleave(x, n, dim=axis))(v_cache, rep, axis=1)
    scores = torch.einsum("bhqd,bhkd->bhqk", q, k) * (Dh ** -0.5)
    p = _softmax(scores, axis=-1)
    o = torch.einsum("bhqk,bhkd->bhqd", p, v)
    return (lambda x, *d: x.permute(*d))(o, 0, 2, 1, 3).reshape(B, Sq, Hq * Dh) @ wo
```

```python
import sys

HEADER = open('standalone__gqa_block_cached__decode.s.ref').read().split('; Override launch')[0]

class A:
    def __init__(self):
        self.l = []
    def __call__(self, s):
        for line in s.strip('\n').split('\n'):
            self.l.append('    ' + line.strip())
    def label(self, s):
        self.l.append(s + ':')
    def raw(self, s):
        self.l.append(s)
    def text(self):
        return '\n'.join(self.l) + '\n'

def vr(a, n=1):
    return f'v{a}' if n == 1 else f'v[{a}:{a+n-1}]'
def sr(a, n=1):
    return f's{a}' if n == 1 else f's[{a}:{a+n-1}]'

WS_QP = 0
WS_PO = 0x20000
WS_ML = WS_PO + 0x100000
WS_OP = WS_ML + 0x4000
WS_END = WS_OP + 0x100000

SCALE_LOG2E = 0.08838834764831845 * 1.4426950408889634
import struct
def fbits(f):
    return '0x%08x' % struct.unpack('<I', struct.pack('<f', f))[0]

def kernel_begin(a, name):
    a.raw('.text')
    a.raw(f'.globl {name}')
    a.raw('.p2align 8')
    a.raw(f'.type {name},@function')
    a.label(name)

def kernel_desc(a, name, vgpr, sgpr=102):
    acc = (vgpr + 3) // 4 * 4
    a.raw('.section .rodata,"a"')
    a.raw('.p2align 6')
    a.raw(f'.amdhsa_kernel {name}')
    a.raw(f'  .amdhsa_next_free_vgpr {vgpr}')
    a.raw(f'  .amdhsa_next_free_sgpr {sgpr}')
    a.raw(f'  .amdhsa_accum_offset {acc}')
    a.raw('  .amdhsa_group_segment_fixed_size 0')
    a.raw('  .amdhsa_kernarg_size 64')
    a.raw('  .amdhsa_user_sgpr_count 2')
    a.raw('  .amdhsa_user_sgpr_kernarg_segment_ptr 1')
    a.raw('  .amdhsa_system_sgpr_workgroup_id_x 1')
    a.raw('.end_amdhsa_kernel')

def srd(a, d, base, nbytes):
    a(f's_mov_b32 s{d}, s{base}')
    a(f's_and_b32 s{d+1}, s{base+1}, 0xffff')
    a(f's_mov_b32 s{d+2}, {nbytes:#x}')
    a(f's_mov_b32 s{d+3}, 0x20000')

def load_args(a):
    a('s_load_dwordx16 s[4:19], s[0:1], 0')

SEL_LO, SEL_HI = 90, 91
def perm_consts(a):
    a(f's_mov_b32 s{SEL_LO}, 0x05040100')
    a(f's_mov_b32 s{SEL_HI}, 0x07060302')

def perm_pair(a, dst, blk, q, hi):
    sel = SEL_HI if hi else SEL_LO
    for u in range(4):
        a(f'v_perm_b32 v{dst+u}, v{blk+4*(2*u+1)+q}, v{blk+4*(2*u)+q}, s{sel}')

def gen_qproj(a):
    name = 'qproj_kernel'
    kernel_begin(a, name)
    a('s_cmp_ge_u32 s2, 256')
    a('s_cbranch_scc1 L_q_done')
    load_args(a)
    perm_consts(a)
    a('''
    s_lshr_b32 s20, s2, 6          ; hkv
    s_and_b32 s21, s2, 15          ; cblk
    s_lshr_b32 s22, s2, 4
    s_and_b32 s22, s22, 3          ; kq
    v_and_b32 v1, 15, v0           ; n'
    v_lshrrev_b32 v2, 4, v0        ; g
    v_and_b32 v3, 7, v1            ; c
    v_lshrrev_b32 v4, 3, v1        ; a
    v_lshlrev_b32 v5, 18, v4       ; 32a * 8192
    v_lshlrev_b32 v6, 16, v2       ; 8g * 8192
    v_lshlrev_b32 v7, 4, v3        ; 16c
    v_add3_u32 v5, v5, v6, v7
    v_and_b32 v6, 1, v0            ; b = m&1
    v_lshlrev_b32 v6, 11, v6       ; b*2048
    v_bfe_u32 v7, v0, 1, 1         ; a' = (m>>1)&1
    v_lshlrev_b32 v7, 6, v7        ; 64a'
    v_lshlrev_b32 v8, 4, v2        ; 16g
    v_add3_u32 v6, v6, v7, v8
    s_lshl_b32 s23, s22, 21        ; 256kq*8192
    s_lshl_b32 s24, s20, 11        ; 1024hkv*2
    s_lshl_b32 s25, s21, 7         ; 64cblk*2
    s_add_u32 s23, s23, s24
    s_add_u32 s23, s23, s25
    s_lshl_b32 s26, s22, 9
    s_waitcnt lgkmcnt(0)
    ''')
    srd(a, 28, 10, 0x800000)
    srd(a, 32, 4, 0x1000)
    srd(a, 36, 18, WS_END)
    for w in range(4):
        a(f'buffer_load_dwordx4 v[{16+4*w}:{19+4*w}], v6, s[32:35], s26 offen offset:{128*w}')
    for w in range(4):
        for t in range(8):
            r = 64 + 32*w + 4*t
            a(f'buffer_load_dwordx4 v[{r}:{r+3}], v5, s[28:31], s23 offen')
            a(f's_add_u32 s23, s23, {8192 if t < 7 else 8192*57}')
    for w in range(4):
        a(f's_waitcnt vmcnt({8*(3-w)})')
        for q in range(4):
            for hi in range(2):
                i = 2*q + hi
                tmp = 192 + 4*(i % 4)
                perm_pair(a, tmp, 64 + 32*w, q, hi)
                a('s_nop 1')
                c = '0' if w == 0 else f'v[{32+4*i}:{35+4*i}]'
                a(f'v_mfma_f32_16x16x32_bf16 v[{32+4*i}:{35+4*i}], v[{16+4*w}:{19+4*w}], v[{tmp}:{tmp+3}], {c}')
    a('s_nop 7\ns_nop 3')
    for b in range(2):
        for i in range(8):
            a(f'v_add_f32_dpp v{64+8*b+i}, v{32+4*i+2+b}, v{32+4*i+b} row_ror:8 row_mask:0xf bank_mask:0xf')
    a('''
    s_lshl_b32 s23, s22, 15        ; kq*32768
    s_lshl_b32 s24, s20, 12        ; 1024hkv*4
    s_lshl_b32 s25, s21, 8         ; 64cblk*4
    s_add_u32 s23, s23, s24
    s_add_u32 s23, s23, s25
    s_add_u32 s24, s23, 16384
    v_lshlrev_b32 v1, 5, v0
    s_mov_b64 exec, 0xff
    buffer_store_dwordx4 v[64:67], v1, s[36:39], s23 offen
    buffer_store_dwordx4 v[68:71], v1, s[36:39], s23 offen offset:16
    buffer_store_dwordx4 v[72:75], v1, s[36:39], s24 offen
    buffer_store_dwordx4 v[76:79], v1, s[36:39], s24 offen offset:16
    ''')
    a.label('L_q_done')
    a('s_endpgm')
    kernel_desc(a, name, 208)

LDS_Q, LDS_ML, LDS_O = 0, 2048, 4096
LDS_ATTN = 4096 + 4*4096
NSLOT = 5
SLOT0 = 96
QF = 8
SB = 24
OB = 56

def gen_attn(a, ldflag=''):
    name = 'attn_kernel'
    kernel_begin(a, name)
    a('s_cmp_ge_u32 s2, 256')
    a('s_cbranch_scc1 L_a_done')
    load_args(a)
    perm_consts(a)
    a('''
    v_lshrrev_b32 v1, 6, v0
    s_lshr_b32 s20, s2, 6          ; hkv
    s_bfe_u32 s21, s2, 0x10005     ; b = (wg>>5)&1
    v_readfirstlane_b32 s23, v1
    s_and_b32 s22, s2, 31          ; split
    v_and_b32 v0, 63, v0           ; lane
    v_and_b32 v3, 15, v0           ; l&15
    v_lshrrev_b32 v4, 4, v0        ; g
    s_waitcnt lgkmcnt(0)
    ''')
    srd(a, 36, 18, WS_END)
    a('s_cmp_ge_u32 s23, 4')
    a('s_cbranch_scc1 L_a_helper')
    srd(a, 28, 6, 0x4000000)
    srd(a, 32, 8, 0x4000000)
    a('''
    v_lshlrev_b32 v1, 8, v3
    v_lshl_add_u32 v1, v4, 4, v1   ; vKoff = (l&15)*256 + g*16
    v_lshlrev_b32 v2, 4, v3
    v_lshl_add_u32 v2, v4, 10, v2  ; vVoff = g*1024 + (l&15)*16
    s_lshl_b32 s24, s21, 2
    s_add_u32 s24, s24, s20        ; b*4+hkv
    s_lshl_b32 s24, s24, 23        ; *32768*256
    s_lshl_b32 s25, s22, 18        ; split*1024*256
    s_add_u32 s24, s24, s25
    s_lshl_b32 s25, s23, 16        ; wave*256*256
    s_add_u32 s24, s24, s25
    s_mov_b32 s25, s24
    ''')
    def issue(n):
        base = SLOT0 + 32*(n % NSLOT)
        for u in range(2):
            for j in range(4):
                r = base + 16*u + 4*j
                if n < 8:
                    a(f'buffer_load_dwordx4 v[{r}:{r+3}], v1, s[28:31], s24 offen offset:{64*j} {ldflag}')
                else:
                    a(f'buffer_load_dwordx4 v[{r}:{r+3}], v2, s[32:35], s25 offen offset:{256*j} {ldflag}')
            a(f's_add_u32 s{24 if n < 8 else 25}, s{24 if n < 8 else 25}, 4096')
    for n in range(NSLOT):
        issue(n)
    for r in range(16):
        a(f'v_mov_b32 v{QF+r}, 0')
    a('''
    v_lshlrev_b32 v5, 8, v3
    v_lshl_add_u32 v5, v4, 4, v5   ; h*256 + 16g
    s_barrier
    s_mov_b32 s40, 0x00ff00ff
    s_mov_b32 s41, 0x00ff00ff
    s_mov_b64 exec, s[40:41]
    ''')
    for j in range(4):
        a(f'ds_read_b128 v[{QF+4*j}:{QF+4*j+3}], v5 offset:{LDS_Q+64*j}')
    a('s_mov_b64 exec, -1')
    a('s_waitcnt lgkmcnt(0)')
    def outstanding_after(n):
        return 8 * (min(n + NSLOT - 1, 15) - n)
    for n in range(8):
        base = SLOT0 + 32*(n % NSLOT)
        a(f's_waitcnt vmcnt({outstanding_after(n)})')
        for j in range(4):
            for u in range(2):
                d = SB + 8*n + 4*u
                c = '0' if j == 0 else f'v[{d}:{d+3}]'
                r = base + 16*u + 4*j
                a(f'v_mfma_f32_16x16x32_bf16 v[{d}:{d+3}], v[{r}:{r+3}], v[{QF+4*j}:{QF+4*j+3}], {c}')
        issue(n + NSLOT)
    a('s_nop 7')
    a(f'v_max3_f32 v88, v{SB}, v{SB+1}, v{SB+2}')
    a(f'v_max3_f32 v89, v{SB+3}, v{SB+4}, v{SB+5}')
    k = 6
    while k < 64:
        a(f'v_max3_f32 v88, v88, v{SB+k}, v{SB+k+1}')
        if k + 2 < 64:
            a(f'v_max3_f32 v89, v89, v{SB+k+2}, v{SB+k+3}')
        k += 4
    a('''
    v_max_f32 v88, v88, v89
    s_nop 0
    v_mov_b32 v89, v88
    s_nop 1
    v_permlane32_swap_b32 v88, v89
    s_nop 1
    v_max_f32 v88, v88, v89
    s_nop 0
    v_mov_b32 v89, v88
    s_nop 1
    v_permlane16_swap_b32 v88, v89
    s_nop 1
    v_max_f32 v88, v88, v89
    ''')
    a(f's_mov_b32 s42, {fbits(SCALE_LOG2E)}')
    a('v_mul_f32 v88, s42, v88')
    a('v_mov_b32 v90, 0\nv_mov_b32 v91, 0')
    for k in range(64):
        a(f'v_fma_f32 v{SB+k}, v{SB+k}, s42, -v88')
    for k in range(64):
        a(f'v_exp_f32 v{SB+k}, v{SB+k}')
    a('s_nop 0')
    for k in range(0, 64, 2):
        a(f'v_add_f32 v90, v90, v{SB+k}')
        a(f'v_add_f32 v91, v91, v{SB+k+1}')
        a(f'v_cvt_pk_bf16_f32 v{SB+k//2}, v{SB+k}, v{SB+k+1}')
    a('v_add_f32 v90, v90, v91')
    for n in range(8, 16):
        base = SLOT0 + 32*(n % NSLOT)
        a(f's_waitcnt vmcnt({outstanding_after(n)})')
        p = SB + 4*(n-8)
        for q in range(4):
            for hi in range(2):
                i = 2*q + hi
                tmp = QF + 4*(i % 4)
                perm_pair(a, tmp, base, q, hi)
                a('s_nop 1')
                d = OB + 4*i
                c = '0' if n == 8 else f'v[{d}:{d+3}]'
                a(f'v_mfma_f32_16x16x32_bf16 v[{d}:{d+3}], v[{tmp}:{tmp+3}], v[{p}:{p+3}], {c}')
        if n + NSLOT < 16:
            issue(n + NSLOT)
    a('''
    v_mov_b32 v91, v90
    s_nop 1
    v_permlane32_swap_b32 v90, v91
    s_nop 1
    v_add_f32 v90, v90, v91
    s_nop 0
    v_mov_b32 v91, v90
    s_nop 1
    v_permlane16_swap_b32 v90, v91
    s_nop 1
    v_add_f32 v89, v90, v91        ; v[88:89] = (m, l)
    s_lshl_b32 s43, s23, 12        ; wave*4096
    v_lshlrev_b32 v5, 9, v3
    v_lshl_add_u32 v5, v4, 7, v5   ; h*512 + 128g
    v_add_u32 v5, s43, v5
    s_lshl_b32 s43, s23, 6         ; wave*64
    v_lshlrev_b32 v6, 3, v3
    v_add_u32 v6, s43, v6          ; wave*64 + h*8
    s_nop 4
    s_mov_b64 exec, s[40:41]
    ''')
    for i in range(8):
        a(f'ds_write_b128 v5, v[{OB+4*i}:{OB+4*i+3}] offset:{LDS_O+16*i}')
    a('s_mov_b64 exec, 0xff')
    a(f'ds_write_b64 v6, v[88:89] offset:{LDS_ML}')
    a('s_mov_b64 exec, -1')
    a('s_waitcnt lgkmcnt(0)')
    a('s_barrier')
    a('''
    s_lshl_b32 s43, s23, 1
    v_lshrrev_b32 v5, 5, v0
    v_add_u32 v5, s43, v5          ; h
    v_and_b32 v6, 31, v0           ; quad
    v_lshlrev_b32 v7, 3, v5        ; h*8
    v_lshlrev_b32 v5, 9, v5
    v_lshl_add_u32 v5, v6, 4, v5   ; h*512 + quad*16
    ''')
    for w in range(4):
        a(f'ds_read_b64 v[{8+2*w}:{9+2*w}], v7 offset:{LDS_ML+64*w}')
    for w in range(4):
        a(f'ds_read_b128 v[{16+4*w}:{19+4*w}], v5 offset:{LDS_O+4096*w}')
    a('''
    s_waitcnt lgkmcnt(4)
    v_max_f32 v32, v8, v10
    v_max3_f32 v32, v32, v12, v14   ; M
    v_sub_f32 v8, v8, v32
    v_sub_f32 v10, v10, v32
    v_sub_f32 v12, v12, v32
    v_sub_f32 v14, v14, v32
    v_exp_f32 v8, v8
    v_exp_f32 v10, v10
    v_exp_f32 v12, v12
    v_exp_f32 v14, v14
    s_nop 0
    v_mul_f32 v33, v8, v9
    v_fmac_f32 v33, v10, v11
    v_fmac_f32 v33, v12, v13
    v_fmac_f32 v33, v14, v15        ; L
    s_waitcnt lgkmcnt(0)
    ''')
    for e in range(4):
        a(f'v_mul_f32 v{36+e}, v8, v{16+e}')
        a(f'v_fmac_f32 v{36+e}, v10, v{20+e}')
        a(f'v_fmac_f32 v{36+e}, v12, v{24+e}')
        a(f'v_fmac_f32 v{36+e}, v14, v{28+e}')
    a(f'''
    s_lshl_b32 s43, s2, 12
    s_add_u32 s43, s43, {WS_PO:#x}
    s_lshl_b32 s44, s2, 6
    s_add_u32 s44, s44, {WS_ML:#x}
    buffer_store_dwordx4 v[36:39], v5, s[36:39], s43 offen
    v_cmp_eq_u32 vcc, 0, v6
    s_and_saveexec_b64 s[46:47], vcc
    buffer_store_dwordx2 v[32:33], v7, s[36:39], s44 offen
    s_endpgm
    ''')
    a.label('L_a_helper')
    a('''
    s_sub_u32 s23, s23, 4          ; u
    s_lshl_b32 s24, s21, 14        ; b*16384
    s_lshl_b32 s25, s20, 12        ; hkv*1024*4
    s_add_u32 s24, s24, s25
    s_lshl_b32 s25, s23, 10        ; u*256*4
    s_add_u32 s24, s24, s25
    v_lshlrev_b32 v1, 4, v0
    ''')
    for kq in range(4):
        a(f'buffer_load_dwordx4 v[{8+4*kq}:{11+4*kq}], v1, s[36:39], s24 offen')
        a('s_add_u32 s24, s24, 32768')
    a('''
    s_lshl_b32 s25, s23, 9
    v_lshlrev_b32 v2, 3, v0
    v_add_u32 v2, s25, v2
    s_waitcnt vmcnt(0)
    ''')
    for e in range(4):
        a(f'v_add_f32 v{8+e}, v{8+e}, v{12+e}')
        a(f'v_add_f32 v{16+e}, v{16+e}, v{20+e}')
        a(f'v_add_f32 v{8+e}, v{8+e}, v{16+e}')
    a(f'''
    v_cvt_pk_bf16_f32 v8, v8, v9
    v_cvt_pk_bf16_f32 v9, v10, v11
    ds_write_b64 v2, v[8:9] offset:{LDS_Q}
    s_waitcnt lgkmcnt(0)
    s_barrier
    s_barrier
    ''')
    a.label('L_a_done')
    a('s_endpgm')
    kernel_desc(a, name, 256)

def gen_stage2(a):
    name = 'comb_kernel'
    kernel_begin(a, name)
    a('s_cmp_ge_u32 s2, 256')
    a('s_cbranch_scc1 L_c_done')
    load_args(a)
    perm_consts(a)
    a('''
    v_lshrrev_b32 v1, 6, v0
    s_lshr_b32 s20, s2, 6          ; hkv
    s_and_b32 s21, s2, 1           ; ch
    v_readfirstlane_b32 s23, v1
    s_bfe_u32 s22, s2, 0x50001
    v_and_b32 v0, 63, v0           ; lane
    v_and_b32 v3, 15, v0           ; l&15
    v_lshrrev_b32 v4, 4, v0        ; g
    s_waitcnt lgkmcnt(0)
    ''')
    srd(a, 36, 18, WS_END)
    srd(a, 28, 12, 0x800000)
    a('''
    v_lshlrev_b32 v1, 4, v3
    v_lshl_add_u32 v1, v4, 12, v1  ; 2g*2048 + 16n'
    s_lshl_b32 s24, s20, 10        ; 1024 hkv
    s_lshl_b32 s25, s22, 5         ; 32 rb
    s_add_u32 s24, s24, s25
    s_lshl_b32 s24, s24, 11        ; row0*2048
    s_lshl_b32 s25, s21, 10        ; 512ch*2
    s_add_u32 s24, s24, s25
    s_lshl_b32 s25, s23, 8         ; 128w*2
    s_add_u32 s24, s24, s25
    ''')
    for t in range(8):
        a(f's_add_u32 s25, s24, {(8*(t&3) + (t>>2))*2048}')
        a(f'buffer_load_dwordx4 v[{64+4*t}:{67+4*t}], v1, s[28:31], s25 offen')
    a(f'''
    v_and_b32 v5, 1, v3            ; b
    v_lshrrev_b32 v6, 1, v3        ; sg
    v_lshl_add_u32 v5, v5, 5, v6   ; 32b + sg
    v_lshlrev_b32 v6, 12, v5       ; *4096
    v_lshl_add_u32 v6, v4, 5, v6   ; + 8g*4
    v_lshlrev_b32 v7, 6, v5        ; *64
    s_lshl_b32 s24, s20, 18        ; 64hkv*4096
    s_lshl_b32 s25, s22, 7
    s_add_u32 s24, s24, s25
    s_add_u32 s24, s24, {WS_PO:#x}
    s_lshl_b32 s26, s20, 12        ; 64hkv*64
    s_lshr_b32 s25, s22, 2
    s_lshl_b32 s25, s25, 3         ; hh*8
    s_add_u32 s26, s26, s25
    s_add_u32 s26, s26, {WS_ML:#x}
    ''')
    for u in range(4):
        a(f'buffer_load_dwordx4 v[{16+8*u}:{19+8*u}], v6, s[36:39], s24 offen')
        a(f'buffer_load_dwordx4 v[{20+8*u}:{23+8*u}], v6, s[36:39], s24 offen offset:16')
        a(f'buffer_load_dwordx2 v[{8+2*u}:{9+2*u}], v7, s[36:39], s26 offen offset:{512*u}')
        a(f's_add_u32 s24, s24, {8*4096}')
    a('s_waitcnt vmcnt(12)')
    for q in range(4):
        for hi in range(2):
            perm_pair(a, 96 + 4*(2*q+hi), 64, q, hi)
    a('''
    s_waitcnt vmcnt(0)
    v_max_f32 v48, v8, v10
    v_max3_f32 v48, v48, v12, v14
    s_nop 1
    v_max_f32_dpp v48, v48, v48 row_ror:2 row_mask:0xf bank_mask:0xf
    s_nop 1
    v_max_f32_dpp v48, v48, v48 row_ror:4 row_mask:0xf bank_mask:0xf
    s_nop 1
    v_max_f32_dpp v48, v48, v48 row_ror:8 row_mask:0xf bank_mask:0xf
    v_sub_f32 v8, v8, v48
    v_sub_f32 v10, v10, v48
    v_sub_f32 v12, v12, v48
    v_sub_f32 v14, v14, v48
    v_exp_f32 v8, v8
    v_exp_f32 v10, v10
    v_exp_f32 v12, v12
    v_exp_f32 v14, v14
    s_nop 0
    v_mul_f32 v58, v8, v9
    v_fmac_f32 v58, v10, v11
    v_fmac_f32 v58, v12, v13
    v_fmac_f32 v58, v14, v15
    ''')
    for e in range(8):
        a(f'v_mul_f32 v{50+e}, v8, v{16+e}')
    for e in range(8):
        a(f'v_fmac_f32 v{50+e}, v10, v{24+e}')
    for e in range(8):
        a(f'v_fmac_f32 v{50+e}, v12, v{32+e}')
    for e in range(8):
        a(f'v_fmac_f32 v{50+e}, v14, v{40+e}')
    for ror in (2, 4, 8):
        a('s_nop 1')
        for e in range(9):
            a(f'v_add_f32_dpp v{50+e}, v{50+e}, v{50+e} row_ror:{ror} row_mask:0xf bank_mask:0xf')
    a('v_rcp_f32 v58, v58\ns_nop 0')
    for e in range(8):
        a(f'v_mul_f32 v{50+e}, v{50+e}, v58')
    for e in range(4):
        a(f'v_cvt_pk_bf16_f32 v{60+e}, v{50+2*e}, v{51+2*e}')
    a('s_nop 1')
    for i in range(8):
        a(f'v_mfma_f32_16x16x32_bf16 v[{128+4*i}:{131+4*i}], v[60:63], v[{96+4*i}:{99+4*i}], 0')
    a(f'''
    s_lshl_b32 s24, s20, 5
    s_add_u32 s24, s24, s22
    s_lshl_b32 s24, s24, 13
    s_lshl_b32 s25, s21, 11        ; 512ch*4
    s_add_u32 s24, s24, s25
    s_lshl_b32 s25, s23, 9         ; 128w*4
    s_add_u32 s24, s24, s25
    s_add_u32 s24, s24, {WS_OP:#x}
    s_add_u32 s25, s24, 4096
    v_lshlrev_b32 v1, 5, v0
    s_nop 7
    ''')
    for b in range(2):
        for i in range(8):
            a(f'v_mov_b32 v{16+8*b+i}, v{128+4*i+b}')
    a('''
    s_mov_b64 exec, 0xffff
    buffer_store_dwordx4 v[16:19], v1, s[36:39], s24 offen
    buffer_store_dwordx4 v[20:23], v1, s[36:39], s24 offen offset:16
    buffer_store_dwordx4 v[24:27], v1, s[36:39], s25 offen
    buffer_store_dwordx4 v[28:31], v1, s[36:39], s25 offen offset:16
    ''')
    a.label('L_c_done')
    a('s_endpgm')
    kernel_desc(a, name, 160)

def gen_stage3(a):
    name = 'final_kernel'
    kernel_begin(a, name)
    a('s_cmp_ge_u32 s2, 256')
    a('s_cbranch_scc1 L_f_done')
    load_args(a)
    a(f'''
    v_lshrrev_b32 v1, 1, v0        ; p_lo
    v_and_b32 v2, 1, v0            ; half
    v_lshlrev_b32 v1, 13, v1
    v_lshl_add_u32 v1, v2, 4, v1
    s_lshl_b32 s24, s2, 5          ; (b*1024 + n0)*4 = 8c*4
    s_add_u32 s24, s24, {WS_OP:#x}
    s_waitcnt lgkmcnt(0)
    ''')
    srd(a, 36, 18, WS_END)
    srd(a, 28, 14, 4096)
    for u in range(4):
        a(f'buffer_load_dwordx4 v[{8+4*u}:{11+4*u}], v1, s[36:39], s24 offen')
        a(f's_add_u32 s24, s24, {32*8192}')
    a('s_waitcnt vmcnt(0)')
    for e in range(4):
        a(f'v_add_f32 v{8+e}, v{8+e}, v{12+e}')
        a(f'v_add_f32 v{16+e}, v{16+e}, v{20+e}')
    for e in range(4):
        a(f'v_add_f32 v{8+e}, v{8+e}, v{16+e}')
    for ror in (2, 4, 8):
        a('s_nop 1')
        for e in range(4):
            a(f'v_add_f32_dpp v{8+e}, v{8+e}, v{8+e} row_ror:{ror} row_mask:0xf bank_mask:0xf')
    for sw in ('v_permlane16_swap_b32', 'v_permlane32_swap_b32'):
        for e in range(4):
            a(f'v_mov_b32 v{12+e}, v{8+e}')
        a('s_nop 1')
        for e in range(4):
            a(f'{sw} v{8+e}, v{12+e}')
        a('s_nop 1')
        for e in range(4):
            a(f'v_add_f32 v{8+e}, v{8+e}, v{12+e}')
    a('''
    v_cvt_pk_bf16_f32 v8, v8, v9
    v_cvt_pk_bf16_f32 v9, v10, v11
    s_lshl_b32 s24, s2, 4
    v_lshlrev_b32 v1, 3, v0
    s_mov_b64 exec, 3
    buffer_store_dwordx2 v[8:9], v1, s[28:31], s24 offen
    ''')
    a.label('L_f_done')
    a('s_endpgm')
    kernel_desc(a, name, 32)

def main():
    out = sys.argv[1]
    ldflag = sys.argv[2] if len(sys.argv) > 2 else ''
    a = A()
    a.raw(HEADER.rstrip('\n'))
    a.raw('; @launch kernel=qproj_kernel grid=(256,1,1) block=(64,1,1) lds=0')
    a.raw(f'; @launch kernel=attn_kernel grid=(256,1,1) block=(512,1,1) lds={LDS_ATTN}')
    a.raw('; @launch kernel=comb_kernel grid=(256,1,1) block=(256,1,1) lds=0')
    a.raw('; @launch kernel=final_kernel grid=(256,1,1) block=(64,1,1) lds=0')
    a.raw('.amdgcn_target "amdgcn-amd-amdhsa--gfx950"')
    gen_qproj(a)
    gen_attn(a, ldflag)
    gen_stage2(a)
    gen_stage3(a)
    open(out, 'w').write(a.text())

main()
```

```python
import sys, struct, argparse

HEADER = open('standalone__gqa_block_cached__decode.s.ref').read().split('; Override launch')[0]
NAME = 'standalone__gqa_block_cached__decode_kernel'

class A:
    def __init__(self):
        self.l = []
    def __call__(self, s):
        for line in s.strip('\n').split('\n'):
            if line.strip():
                self.l.append('    ' + line.strip())
    def label(self, s):
        self.l.append(s + ':')
    def raw(self, s):
        self.l.append(s)
    def extend(self, lines):
        self.l.extend(lines)
    def text(self):
        return '\n'.join(self.l) + '\n'

WS_QP = 0
WS_PO = 0x20000
WS_ML = WS_PO + 0x100000
WS_OP = WS_ML + 0x4000
WS_TS = WS_OP + 0x100000
WS_END = WS_TS + 0x20000

SCALE_LOG2E = 0.08838834764831845 * 1.4426950408889634
def fbits(f):
    return '0x%08x' % struct.unpack('<I', struct.pack('<f', f))[0]

def srd(a, d, base, nbytes):
    a(f's_mov_b32 s{d}, s{base}')
    a(f's_and_b32 s{d+1}, s{base+1}, 0xffff')
    a(f's_mov_b32 s{d+2}, {nbytes:#x}')
    a(f's_mov_b32 s{d+3}, 0x20000')

SEL_LO, SEL_HI = 90, 91
def perm_pair(a, dst, blk, q, hi):
    sel = SEL_HI if hi else SEL_LO
    for u in range(4):
        a(f'v_perm_b32 v{dst+u}, v{blk+4*(2*u+1)+q}, v{blk+4*(2*u)+q}, s{sel}')

def xlane(a, op, v, t, which):
    sw = 'v_permlane16_swap_b32' if which == 16 else 'v_permlane32_swap_b32'
    a(f'v_mov_b32 v{t}, v{v}\ns_nop 1\n{sw} v{v}, v{t}\ns_nop 1\n{op} v{v}, v{v}, v{t}')

LDS_RING = 32768
LDS_Q = 4*LDS_RING
LDS_ML = LDS_Q + 2048
LDS_C = LDS_Q + 4096
LDS_TOTAL = LDS_Q + 8192
KD, KR, QF, SB, OB, KF, VS = 8, 12, 16, 32, 64, 96, 128
SPIN = 400000

def gen(opt):
    a = A()
    ld = opt.ldflag
    D = opt.depth
    def TS(idx, tgt=None):
        if opt.ts:
            (tgt or a)(f's_memrealtime s[62:63]\ns_waitcnt lgkmcnt(0)\ns_mov_b32 s{64+idx}, s62')
    def TS_flush(nidx):
        if opt.ts:
            a(f'''
            s_lshl_b32 s62, s2, 9
            s_lshl_b32 s63, s27, 6
            s_add_u32 s62, s62, s63
            s_add_u32 s62, s62, {WS_TS:#x}
            v_mov_b32 v1, 0
            s_mov_b64 exec, 1
            ''')
            for i in range(nidx):
                a(f'v_mov_b32 v2, s{64+i}\nbuffer_store_dword v2, v1, s[36:39], s62 offen offset:{4*i}\ns_nop 1')
            a('s_mov_b64 exec, -1')

    a.raw(HEADER.rstrip('\n'))
    a.raw(f'; @launch grid=(256,1,1) block=(512,1,1) lds={LDS_TOTAL}')
    a.raw('.amdgcn_target "amdgcn-amd-amdhsa--gfx950"')
    a.raw('.text')
    a.raw(f'.globl {NAME}')
    a.raw('.p2align 8')
    a.raw(f'.type {NAME},@function')
    a.label(NAME)
    a('s_cmp_ge_u32 s2, 256')
    a('s_cbranch_scc1 L_done')
    a('s_load_dwordx16 s[4:19], s[0:1], 0')
    TS(0)
    a(f'''
    s_mov_b32 s{SEL_LO}, 0x05040100
    s_mov_b32 s{SEL_HI}, 0x07060302
    v_lshrrev_b32 v1, 6, v0
    s_lshr_b32 s20, s2, 6          ; hkv
    s_bfe_u32 s21, s2, 0x10005     ; b = (wg>>5)&1
    v_readfirstlane_b32 s23, v1
    s_and_b32 s22, s2, 31          ; split
    v_and_b32 v0, 63, v0           ; lane
    v_and_b32 v3, 15, v0           ; l&15
    v_lshrrev_b32 v4, 4, v0        ; g
    s_mov_b32 s27, s23
    s_cmp_ge_u32 s23, 4
    s_cbranch_scc1 L_helper
    ''')
    a('''
    v_lshlrev_b32 v1, 4, v3
    v_lshl_add_u32 v1, v4, 10, v1  ; vVoff = g*1024 + (l&15)*16
    s_lshl_b32 s24, s21, 2
    s_add_u32 s24, s24, s20        ; b*4+hkv
    s_lshl_b32 s24, s24, 23        ; *32768*256
    s_lshl_b32 s25, s22, 18        ; split*1024*256
    s_add_u32 s24, s24, s25
    s_lshl_b32 s25, s23, 16        ; wave*256*256
    s_add_u32 s24, s24, s25
    s_mov_b32 s25, s24
    s_lshl_b32 s50, s23, 15
    v_lshlrev_b32 v5, 8, v4        ; g*256
    v_lshlrev_b32 v6, 8, v3        ; r*256
    v_add_u32 v6, s50, v6
    ''')
    for i in range(4):
        a(f'v_add_u32 v7, {4*i}, v4')
        a('v_xor_b32 v7, v7, v3')
        a(f'v_lshl_add_u32 v{KD+i}, v7, 4, v5')
        a(f'v_lshl_add_u32 v{KR+i}, v7, 4, v6')
    a('s_waitcnt lgkmcnt(0)')
    srd(a, 28, 6, 0x4000000)
    srd(a, 32, 8, 0x4000000)
    srd(a, 36, 18, WS_END)

    order = [('K', 0), ('K', 1), ('K', 2), ('K', 3), ('V', 0), ('V', 1), ('V', 2), ('V', 3),
             ('K', 4), ('K', 5), ('K', 6), ('K', 7), ('V', 4), ('V', 5), ('V', 6), ('V', 7)]
    last_idx = {}
    for n, key in enumerate(order):
        last_idx[key] = 8*n + 7
    issued = [0]
    def load_pair(blk, pi):
        kind, i = blk
        t = A()
        if issued[0] >= D - 1:
            t(f's_waitcnt vmcnt({D-2})')
        u, jj = pi // 2, (pi % 2)*2
        if kind == 'K':
            if jj == 0:
                t(f's_add_u32 m0, s50, {(i % 4)*8192 + u*4096}')
                t('s_nop 0')
            for j in (jj, jj+1):
                t(f'buffer_load_dwordx4 v{KD+j}, s[28:31], s24 offen offset:{1024*j} {ld} lds')
            if jj == 2:
                t('s_add_u32 s24, s24, 4096')
        else:
            base = VS + 32*(i % 4)
            for j in (jj, jj+1):
                r = base + 16*u + 4*j
                t(f'buffer_load_dwordx4 v[{r}:{r+3}], v1, s[32:35], s25 offen offset:{256*j} {ld}')
            if jj == 2:
                t('s_add_u32 s25, s25, 4096')
        issued[0] += 2
        return t.l
    def need(key):
        return ('NEED', key)

    def atom_qk(i):
        t = A()
        t.l.append(need(('K', i)))
        for u in range(2):
            for j in range(4):
                t(f'ds_read_b128 v[{KF+16*u+4*j}:{KF+16*u+4*j+3}], v{KR+j} offset:{(i % 4)*8192 + u*4096}')
        for u in range(2):
            t(f's_waitcnt lgkmcnt({4*(1-u)})')
            d = SB + 8*(i % 4) + 4*u
            for j in range(4):
                c = '0' if j == 0 else f'v[{d}:{d+3}]'
                r = KF + 16*u + 4*j
                t(f'v_mfma_f32_16x16x32_bf16 v[{d}:{d+3}], v[{r}:{r+3}], v[{QF+4*j}:{QF+4*j+3}], {c}')
        return t.l
    def atom_softmax(chunk):
        t = A()
        t('s_nop 7')
        t(f'v_max3_f32 v6, v{SB}, v{SB+1}, v{SB+2}')
        t(f'v_max3_f32 v7, v{SB+3}, v{SB+4}, v{SB+5}')
        k = 6
        while k < 32:
            t(f'v_max3_f32 v6, v6, v{SB+k}, v{SB+k+1}')
            if k + 2 < 32:
                t(f'v_max3_f32 v7, v7, v{SB+k+2}, v{SB+k+3}')
            k += 4
        t('v_max_f32 v6, v6, v7')
        t('s_nop 0')
        xlane(t, 'v_max_f32', 6, 7, 32)
        t('s_nop 0')
        xlane(t, 'v_max_f32', 6, 7, 16)
        if chunk == 0:
            t('v_mul_f32 v2, s42, v6')
            t('v_mov_b32 v5, 0')
        else:
            t('v_mul_f32 v6, s42, v6')
            t('v_max_f32 v6, v6, v2')
            t('v_sub_f32 v7, v2, v6')
            t('v_exp_f32 v7, v7              ; alpha')
            t('v_mov_b32 v2, v6')
            t('v_mul_f32 v5, v5, v7')
            for k in range(32):
                t(f'v_mul_f32 v{OB+k}, v{OB+k}, v7')
        t('v_mov_b32 v6, 0')
        for k in range(32):
            t(f'v_fma_f32 v{SB+k}, v{SB+k}, s42, -v2')
        for k in range(32):
            t(f'v_exp_f32 v{SB+k}, v{SB+k}')
        t('s_nop 0')
        for k in range(0, 32, 2):
            t(f'v_add_f32 v5, v5, v{SB+k}')
            t(f'v_add_f32 v6, v6, v{SB+k+1}')
            t(f'v_cvt_pk_bf16_f32 v{SB+k//2}, v{SB+k}, v{SB+k+1}')
        t('v_add_f32 v5, v5, v6')
        return t.l
    def atom_pv(i):
        t = A()
        t.l.append(need(('V', i)))
        base = VS + 32*(i % 4)
        p = SB + 4*(i % 4)
        for q in range(4):
            for hi in range(2):
                e = 2*q + hi
                tmp = KF + 4*(e % 4)
                perm_pair(t, tmp, base, q, hi)
                t('s_nop 1')
                d = OB + 4*e
                c = '0' if i == 0 else f'v[{d}:{d+3}]'
                t(f'v_mfma_f32_16x16x32_bf16 v[{d}:{d+3}], v[{tmp}:{tmp+3}], v[{p}:{p+3}], {c}')
        return t.l
    def emit(lines):
        for ln in lines:
            if isinstance(ln, tuple):
                n = issued[0] - 1 - last_idx[ln[1]]
                assert n >= 0, ln
                a(f's_waitcnt vmcnt({min(n, 63)})')
            else:
                a.raw(ln)
    def segment(blk, atoms):
        lines = [x for at in atoms for x in at]
        n = len(lines)
        cuts = [n*k//4 for k in range(5)]
        for pi in range(4):
            a.extend(load_pair(blk, pi))
            emit(lines[cuts[pi]:cuts[pi+1]])

    for blk in order[:8]:
        segment(blk, [])
    for r in range(16):
        a(f'v_mov_b32 v{QF+r}, 0')
    a(f'''
    v_lshlrev_b32 v7, 8, v3
    v_lshl_add_u32 v7, v4, 4, v7   ; h*256 + 16g
    v_add_u32 v7, {LDS_Q}, v7
    s_mov_b32 s40, 0x00ff00ff
    s_mov_b32 s41, 0x00ff00ff
    s_mov_b32 s42, {fbits(SCALE_LOG2E)}
    ''')
    TS(1)
    a('''
    s_barrier
    s_mov_b64 exec, s[40:41]
    ''')
    for j in range(4):
        a(f'ds_read_b128 v[{QF+4*j}:{QF+4*j+3}], v7 offset:{64*j}')
    a('s_mov_b64 exec, -1')
    TS(2)
    a('s_waitcnt lgkmcnt(0)')
    emit(atom_qk(0))
    segment(('K', 4), [atom_qk(1), atom_qk(2), atom_qk(3)])
    segment(('K', 5), [atom_softmax(0)])
    segment(('K', 6), [atom_pv(0), atom_pv(1)])
    segment(('K', 7), [atom_pv(2), atom_pv(3)])
    TS(3)
    segment(('V', 4), [atom_qk(4), atom_qk(5)])
    segment(('V', 5), [atom_qk(6), atom_qk(7)])
    segment(('V', 6), [atom_softmax(1)])
    t = A()
    t('s_nop 0')
    xlane(t, 'v_add_f32', 5, 6, 32)
    t('s_nop 0')
    xlane(t, 'v_add_f32', 5, 6, 16)
    t(f'''
    v_mov_b32 v6, v2
    v_mov_b32 v7, v5
    s_lshl_b32 s43, s23, 6
    v_lshlrev_b32 v2, 3, v3
    v_add_u32 v2, s43, v2          ; wave*64 + h*8
    v_add_u32 v2, {LDS_ML}, v2
    s_mov_b64 exec, 0xff
    ds_write_b64 v2, v[6:7]
    s_mov_b64 exec, -1
    v_lshlrev_b32 v5, 9, v3
    v_lshl_add_u32 v5, v4, 7, v5   ; h*512 + 128g
    v_add_u32 v5, s50, v5
    s_lshl_b32 s43, s23, 1
    v_lshrrev_b32 v7, 5, v0
    v_add_u32 v7, s43, v7
    v_and_b32 v6, 31, v0           ; quad
    v_lshlrev_b32 v8, 9, v7
    v_lshl_add_u32 v8, v6, 4, v8   ; h*512 + quad*16
    v_lshlrev_b32 v7, 3, v7        ; h*8
    v_add_u32 v7, {LDS_ML}, v7
    v_and_b32 v9, 7, v0
    v_lshlrev_b32 v9, 3, v9        ; (l&7)*8
    v_add_u32 v11, {LDS_ML}, v9
    s_lshl_b32 s43, s2, 12
    s_add_u32 s43, s43, {WS_PO:#x}
    s_lshl_b32 s44, s2, 6
    s_add_u32 s44, s44, {WS_ML:#x}
    ''')
    emit(t.l)
    segment(('V', 7), [atom_pv(4), atom_pv(5)])
    TS(4)
    emit(atom_pv(6))
    emit(atom_pv(7))
    TS(5)
    a('s_nop 4')
    a('s_mov_b64 exec, s[40:41]')
    for i in range(8):
        a(f'ds_write_b128 v5, v[{OB+4*i}:{OB+4*i+3}] offset:{16*i}')
    a('s_mov_b64 exec, -1')
    a('s_waitcnt lgkmcnt(0)')
    a('s_barrier')
    for w in range(4):
        a(f'ds_read_b64 v[{40+2*w}:{41+2*w}], v7 offset:{64*w}')
    a(f'v_add_u32 v10, {2*LDS_RING}, v8')
    for w in range(4):
        a(f'ds_read_b128 v[{16+4*w}:{19+4*w}], v{8 if w < 2 else 10} offset:{LDS_RING*(w % 2)}')
    a(f'''
    s_waitcnt lgkmcnt(4)
    v_max_f32 v32, v40, v42
    v_max3_f32 v32, v32, v44, v46   ; M
    v_sub_f32 v40, v40, v32
    v_sub_f32 v42, v42, v32
    v_sub_f32 v44, v44, v32
    v_sub_f32 v46, v46, v32
    v_exp_f32 v40, v40
    v_exp_f32 v42, v42
    v_exp_f32 v44, v44
    v_exp_f32 v46, v46
    s_waitcnt lgkmcnt(0)
    ''')
    for e in range(4):
        a(f'v_mul_f32 v{36+e}, v40, v{16+e}')
    for e in range(4):
        a(f'v_fmac_f32 v{36+e}, v42, v{20+e}')
    for e in range(4):
        a(f'v_fmac_f32 v{36+e}, v44, v{24+e}')
    for e in range(4):
        a(f'v_fmac_f32 v{36+e}, v46, v{28+e}')
    for e in range(4):
        a(f'v_min_u32 v{36+e}, -2, v{36+e}')
    a('''
    buffer_store_dwordx4 v[36:39], v8, s[36:39], s43 offen sc1
    s_cmp_lg_u32 s23, 0
    s_cbranch_scc1 L_s_end
    ''')
    for w in range(4):
        a(f'ds_read_b64 v[{40+2*w}:{41+2*w}], v11 offset:{64*w}')
    a('''
    s_waitcnt lgkmcnt(0)
    v_max_f32 v32, v40, v42
    v_max3_f32 v32, v32, v44, v46   ; M
    v_sub_f32 v40, v40, v32
    v_sub_f32 v42, v42, v32
    v_sub_f32 v44, v44, v32
    v_sub_f32 v46, v46, v32
    v_exp_f32 v40, v40
    v_exp_f32 v42, v42
    v_exp_f32 v44, v44
    v_exp_f32 v46, v46
    v_min_u32 v32, -2, v32
    v_mul_f32 v33, v40, v41
    v_fmac_f32 v33, v42, v43
    v_fmac_f32 v33, v44, v45
    v_fmac_f32 v33, v46, v47        ; L
    v_min_u32 v33, -2, v33
    s_mov_b64 exec, 0xff
    buffer_store_dwordx2 v[32:33], v9, s[36:39], s44 offen sc1
    s_mov_b64 exec, -1
    ''')
    a.label('L_s_end')
    TS(6)
    TS(7)
    TS_flush(8)
    a('s_endpgm')

    a.label('L_helper')
    a('''
    s_setprio 3
    s_sub_u32 s23, s23, 4          ; hw
    s_and_b32 s46, s2, 1           ; ch
    s_bfe_u32 s47, s2, 0x50001
    s_lshl_b32 s48, s20, 5
    s_add_u32 s48, s48, s47
    s_waitcnt lgkmcnt(0)
    ''')
    srd(a, 36, 18, WS_END)
    a('s_cmp_lg_u32 s23, 0')
    a('s_cbranch_scc1 L_h_notq')
    srd(a, 28, 10, 0x800000)
    srd(a, 32, 4, 0x1000)
    a(f'''
    s_and_b32 s21, s2, 15          ; cblk
    s_bfe_u32 s22, s2, 0x20004
    v_mov_b32 v208, -1
    v_mov_b32 v209, -1
    v_mov_b32 v210, -1
    v_mov_b32 v211, -1
    v_lshlrev_b32 v1, 4, v0
    s_lshl_b32 s43, s2, 12
    s_add_u32 s43, s43, {WS_PO:#x}
    s_lshl_b32 s44, s2, 6
    s_add_u32 s44, s44, {WS_ML:#x}
    s_lshl_b32 s52, s22, 15        ; kq*32768
    s_lshl_b32 s25, s20, 12        ; 1024hkv*4
    s_add_u32 s52, s52, s25
    s_lshl_b32 s25, s21, 8         ; 64cblk*4
    s_add_u32 s52, s52, s25
    s_add_u32 s53, s52, 16384
    s_lshl_b32 s24, s48, 13        ; p*8192
    s_lshl_b32 s25, s46, 11        ; ch*2048
    s_add_u32 s24, s24, s25
    s_add_u32 s24, s24, {WS_OP:#x}
    s_add_u32 s25, s24, 4096
    ''')
    for i in range(4):
        a(f'buffer_store_dwordx4 v[208:211], v1, s[36:39], s43 offen offset:{1024*i} sc1')
    for i in range(4):
        a(f'buffer_store_dwordx4 v[208:211], v1, s[36:39], s{24 + i//2} offen offset:{1024*(i & 1)} sc1')
    a('''
    s_mov_b64 exec, 0xffff
    buffer_store_dwordx4 v[208:211], v1, s[36:39], s52 offen sc1
    buffer_store_dwordx4 v[208:211], v1, s[36:39], s53 offen sc1
    s_mov_b64 exec, 0xf
    buffer_store_dwordx4 v[208:211], v1, s[36:39], s44 offen sc1
    s_mov_b64 exec, -1
    v_and_b32 v9, 7, v3            ; c
    v_lshrrev_b32 v10, 3, v3       ; a
    v_lshlrev_b32 v5, 18, v10      ; 32a * 8192
    v_lshlrev_b32 v6, 16, v4       ; 8g * 8192
    v_lshlrev_b32 v7, 4, v9        ; 16c
    v_add3_u32 v5, v5, v6, v7
    v_and_b32 v6, 1, v0            ; b = m&1
    v_lshlrev_b32 v6, 11, v6       ; b*2048
    v_bfe_u32 v7, v0, 1, 1         ; a' = (m>>1)&1
    v_lshlrev_b32 v7, 6, v7        ; 64a'
    v_lshlrev_b32 v8, 4, v4        ; 16g
    v_add3_u32 v6, v6, v7, v8
    s_lshl_b32 s24, s22, 21        ; 256kq*8192
    s_lshl_b32 s25, s20, 11        ; 1024hkv*2
    s_add_u32 s24, s24, s25
    s_lshl_b32 s25, s21, 7         ; 64cblk*2
    s_add_u32 s24, s24, s25
    s_lshl_b32 s26, s22, 9
    ''')
    for w in range(4):
        a(f'buffer_load_dwordx4 v[{16+4*w}:{19+4*w}], v6, s[32:35], s26 offen offset:{128*w}')
    for w in range(4):
        for t_ in range(8):
            r = 64 + 32*w + 4*t_
            a(f'buffer_load_dwordx4 v[{r}:{r+3}], v5, s[28:31], s24 offen {ld}')
            a(f's_add_u32 s24, s24, {8192 if t_ < 7 else 8192*57}')
    a('''
    s_lshl_b32 s26, s20, 6
    v_mov_b32 v2, s26
    v_mov_b32 v5, 1
    s_waitcnt vmcnt(36)
    s_mov_b64 exec, 1
    global_atomic_add v2, v5, s[16:17] sc1
    s_mov_b64 exec, -1
    ''')
    TS(1)
    for w in range(4):
        a(f's_waitcnt vmcnt({8*(3-w)+1})')
        for q in range(4):
            for hi in range(2):
                i = 2*q + hi
                tmp = 192 + 4*(i % 4)
                perm_pair(a, tmp, 64 + 32*w, q, hi)
                a('s_nop 1')
                c = '0' if w == 0 else f'v[{32+4*i}:{35+4*i}]'
                a(f'v_mfma_f32_16x16x32_bf16 v[{32+4*i}:{35+4*i}], v[{16+4*w}:{19+4*w}], v[{tmp}:{tmp+3}], {c}')
    a('s_nop 7')
    for b in range(2):
        for i in range(8):
            a(f'v_add_f32_dpp v{64+8*b+i}, v{32+4*i+2+b}, v{32+4*i+b} row_ror:8 row_mask:0xf bank_mask:0xf')
    for i in range(16):
        a(f'v_min_u32 v{64+i}, -2, v{64+i}')
    a('''
    s_mov_b64 exec, 0xff
    buffer_store_dwordx4 v[64:67], v1, s[36:39], s52 offen sc1
    buffer_store_dwordx4 v[68:71], v1, s[36:39], s52 offen offset:128 sc1
    buffer_store_dwordx4 v[72:75], v1, s[36:39], s53 offen sc1
    buffer_store_dwordx4 v[76:79], v1, s[36:39], s53 offen offset:128 sc1
    s_mov_b64 exec, -1
    ''')
    TS(2)
    a(f'''
    v_and_b32 v2, 3, v0
    v_lshlrev_b32 v2, 6, v2
    s_mov_b32 s60, {SPIN}
    s_bfe_u32 s21, s2, 0x10005     ; b
    s_lshl_b32 s24, s21, 14        ; b*16384
    s_lshl_b32 s25, s20, 12        ; hkv*1024*4
    s_add_u32 s52, s24, s25
    s_add_u32 s53, s52, 32768
    s_add_u32 s54, s52, 65536
    s_add_u32 s55, s52, 98304
    v_and_b32 v6, 7, v0
    v_lshlrev_b32 v6, 4, v6
    v_lshl_add_u32 v6, v4, 7, v6
    v_bfe_u32 v7, v0, 3, 1
    v_lshl_add_u32 v6, v7, 3, v6
    v_add_u32 v6, {LDS_Q}, v6
    s_mov_b64 exec, 0xf
    ''')
    a.label('L_h1_poll')
    a(f'''
    global_load_dword v8, v2, s[16:17] sc1
    s_waitcnt vmcnt(0)
    v_cmp_gt_u32 vcc, 64, v8
    s_cbranch_vccz L_h1_ok
    s_sleep {opt.sleep1}
    s_sub_u32 s60, s60, 1
    s_cmp_lg_u32 s60, 0
    s_cbranch_scc1 L_h1_poll
    ''')
    a.label('L_h1_ok')
    a('s_mov_b64 exec, -1')
    TS(3)
    a.label('L_h1_gather')
    for kq in range(4):
        for u in range(4):
            r = 16 + 16*kq + 4*u
            a(f'buffer_load_dwordx4 v[{r}:{r+3}], v1, s[36:39], s{52+kq} offen offset:{1024*u} sc1')
    a('s_waitcnt vmcnt(0)')
    a('v_max3_u32 v8, v16, v17, v18')
    a('v_max3_u32 v9, v19, v20, v21')
    for k in range(22, 78, 4):
        a(f'v_max3_u32 v8, v8, v{k}, v{k+1}')
        a(f'v_max3_u32 v9, v9, v{k+2}, v{k+3}')
    a(f'''
    v_max3_u32 v8, v8, v78, v79
    v_max_u32 v8, v8, v9
    v_cmp_eq_u32 vcc, -1, v8
    s_cbranch_vccz L_h1_got
    s_sleep {opt.sleep1}
    s_sub_u32 s60, s60, 1
    s_cmp_lg_u32 s60, 0
    s_cbranch_scc1 L_h1_gather
    ''')
    a.label('L_h1_got')
    for e in range(16):
        a(f'v_add_f32 v{16+e}, v{16+e}, v{32+e}')
        a(f'v_add_f32 v{48+e}, v{48+e}, v{64+e}')
    for e in range(16):
        a(f'v_add_f32 v{16+e}, v{16+e}, v{48+e}')
    for e in range(8):
        a(f'v_cvt_pk_bf16_f32 v{16+e}, v{16+2*e}, v{17+2*e}')
    for u in range(4):
        a(f'ds_write_b64 v6, v[{16+2*u}:{17+2*u}] offset:{512*u}')
    a('s_waitcnt lgkmcnt(0)')
    TS(4)
    a.label('L_h_notq')
    a('s_setprio 0')
    a('s_barrier                      ; B1')
    srd(a, 28, 12, 0x800000)
    srd(a, 32, 14, 4096)
    a('''
    v_lshlrev_b32 v1, 4, v3
    v_lshl_add_u32 v1, v4, 12, v1  ; 2g*2048 + 16n'
    s_lshl_b32 s24, s48, 16
    s_lshl_b32 s25, s46, 10        ; 512ch*2
    s_add_u32 s24, s24, s25
    s_lshl_b32 s25, s23, 8         ; 128w*2
    s_add_u32 s24, s24, s25
    ''')
    for t_ in range(8):
        a(f's_add_u32 s25, s24, {(8*(t_&3) + (t_>>2))*2048}')
        a(f'buffer_load_dwordx4 v[{64+4*t_}:{67+4*t_}], v1, s[28:31], s25 offen {ld}')
    a(f'''
    v_bfe_u32 v5, v0, 3, 1         ; b
    v_lshl_add_u32 v5, v5, 5, v4   ; 32b + sg4
    v_and_b32 v7, 7, v0            ; pc
    v_lshlrev_b32 v6, 12, v5       ; *4096
    v_lshl_add_u32 v6, v7, 4, v6   ; + pc*16
    v_lshlrev_b32 v7, 6, v5        ; *64 (ML)
    s_lshl_b32 s24, s20, 18        ; 64hkv*4096
    s_lshl_b32 s25, s47, 7
    s_add_u32 s24, s24, s25
    s_lshl_b32 s25, s23, 15        ; 8hw*4096
    s_add_u32 s24, s24, s25
    s_add_u32 s40, s24, {WS_PO:#x}
    s_add_u32 s41, s40, {4*4096}
    s_lshl_b32 s26, s20, 12        ; 64hkv*64
    s_lshr_b32 s25, s47, 2
    s_lshl_b32 s25, s25, 3         ; hh*8
    s_add_u32 s26, s26, s25
    s_lshl_b32 s25, s23, 9         ; 8hw*64
    s_add_u32 s26, s26, s25
    s_add_u32 s26, s26, {WS_ML:#x}
    v_lshlrev_b32 v8, 4, v3
    s_lshl_b32 s25, s23, 9
    s_add_u32 s25, s25, {LDS_C}
    v_add_u32 v8, s25, v8
    v_bfe_u32 v9, v0, 3, 1
    v_lshlrev_b32 v9, 3, v9
    v_add_u32 v9, s25, v9
    v_and_b32 v10, 1, v0
    v_lshlrev_b32 v11, 3, v10
    v_add_u32 v11, {LDS_C}, v11
    v_lshlrev_b32 v10, 7, v10
    v_lshl_add_u32 v10, v4, 5, v10
    v_add_u32 v10, {LDS_C}, v10
    v_lshlrev_b32 v12, 4, v3
    s_lshl_b32 s44, s48, 13
    s_lshl_b32 s25, s46, 11
    s_add_u32 s44, s44, s25
    s_lshl_b32 s25, s23, 9
    s_add_u32 s44, s44, s25
    s_add_u32 s44, s44, {WS_OP:#x}
    s_add_u32 s45, s44, 4096
    s_mov_b64 s[50:51], -1
    s_mov_b64 s[52:53], -1
    s_mov_b64 s[54:55], -1
    s_mov_b64 s[56:57], -1
    s_mov_b32 s60, {SPIN}
    s_waitcnt vmcnt(0)
    ''')
    for q in range(4):
        for hi in range(2):
            perm_pair(a, 96 + 4*(2*q+hi), 64, q, hi)
    a('s_barrier                      ; B2')
    a.label('L_s2_loop')
    for k in range(2):
        a(f's_mov_b64 exec, s[{50+2*k}:{51+2*k}]')
        a(f's_cbranch_execz L_s2_skip{k}')
        a(f'buffer_load_dwordx4 v[{16+4*k}:{19+4*k}], v6, s[36:39], s{40+k} offen sc1')
        a(f'buffer_load_dwordx2 v[{24+2*k}:{25+2*k}], v7, s[36:39], s26 offen offset:{256*k} sc1')
        a.label(f'L_s2_skip{k}')
    a('s_mov_b64 exec, -1')
    a('s_waitcnt vmcnt(0)')
    for k in range(2):
        a(f'v_max3_u32 v{28+k}, v{16+4*k}, v{17+4*k}, v{18+4*k}')
    for k in range(2):
        a(f'v_max3_u32 v{30+k}, v{19+4*k}, v{24+2*k}, v{25+2*k}')
    for k in range(2):
        a(f'v_max_u32 v{28+k}, v{28+k}, v{30+k}')
    for k in range(2):
        a(f'v_cmp_eq_u32 s[{50+2*k}:{51+2*k}], -1, v{28+k}')
    a(f'''
    s_or_b64 s[58:59], s[50:51], s[52:53]
    s_cbranch_scc0 L_s2_ok
    s_sleep {opt.sleep2}
    s_sub_u32 s60, s60, 1
    s_cmp_lg_u32 s60, 0
    s_cbranch_scc1 L_s2_loop
    ''')
    a.label('L_s2_ok')
    TS(5)
    a('v_max_f32 v32, v24, v26')
    a('s_nop 0')
    xlane(a, 'v_max_f32', 32, 33, 16)
    a('s_nop 0')
    xlane(a, 'v_max_f32', 32, 33, 32)
    a('''
    v_sub_f32 v24, v24, v32
    v_sub_f32 v26, v26, v32
    v_exp_f32 v24, v24
    v_exp_f32 v26, v26
    s_nop 0
    v_mul_f32 v33, v24, v25
    ''')
    for e in range(4):
        a(f'v_mul_f32 v{36+e}, v24, v{16+e}')
    a('v_fmac_f32 v33, v26, v27')
    for e in range(4):
        a(f'v_fmac_f32 v{36+e}, v26, v{20+e}')
    vals = [33, 36, 37, 38, 39]
    for sw in ('v_permlane16_swap_b32', 'v_permlane32_swap_b32'):
        for i, v in enumerate(vals):
            a(f'v_mov_b32 v{40+i}, v{v}')
        a('s_nop 0')
        for i, v in enumerate(vals):
            a(f'{sw} v{v}, v{40+i}')
        a('s_nop 0')
        for i, v in enumerate(vals):
            a(f'v_add_f32 v{v}, v{v}, v{40+i}')
    a('''
    s_mov_b64 exec, 0xffff
    ds_write_b128 v8, v[36:39]
    s_mov_b64 exec, 0x101
    ds_write_b64 v9, v[32:33] offset:256
    s_mov_b64 exec, -1
    s_waitcnt lgkmcnt(0)
    s_barrier
    ''')
    for w in range(4):
        a(f'ds_read_b64 v[{16+2*w}:{17+2*w}], v11 offset:{512*w+256}')
    for w in range(4):
        a(f'ds_read_b128 v[{24+8*w}:{27+8*w}], v10 offset:{512*w}')
        a(f'ds_read_b128 v[{28+8*w}:{31+8*w}], v10 offset:{512*w+16}')
    a('''
    s_waitcnt lgkmcnt(8)
    v_max_f32 v56, v16, v18
    v_max3_f32 v56, v56, v20, v22
    v_sub_f32 v16, v16, v56
    v_sub_f32 v18, v18, v56
    v_sub_f32 v20, v20, v56
    v_sub_f32 v22, v22, v56
    v_exp_f32 v16, v16
    v_exp_f32 v18, v18
    v_exp_f32 v20, v20
    v_exp_f32 v22, v22
    s_nop 0
    v_mul_f32 v57, v16, v17
    v_fmac_f32 v57, v18, v19
    v_fmac_f32 v57, v20, v21
    v_fmac_f32 v57, v22, v23
    v_rcp_f32 v57, v57
    s_nop 0
    v_mul_f32 v16, v16, v57
    v_mul_f32 v18, v18, v57
    v_mul_f32 v20, v20, v57
    v_mul_f32 v22, v22, v57
    s_waitcnt lgkmcnt(0)
    ''')
    for e in range(8):
        a(f'v_mul_f32 v{24+e}, v16, v{24+e}')
    for w in range(1, 4):
        for e in range(8):
            a(f'v_fmac_f32 v{24+e}, v{16+2*w}, v{24+8*w+e}')
    for e in range(4):
        a(f'v_cvt_pk_bf16_f32 v{60+e}, v{24+2*e}, v{25+2*e}')
    a('s_nop 1')
    for i in range(8):
        a(f'v_mfma_f32_16x16x32_bf16 v[{128+4*i}:{131+4*i}], v[60:63], v[{96+4*i}:{99+4*i}], 0')
    a('s_nop 1')
    for i in range(8):
        for b in range(2):
            a(f'v_min_u32 v{16+8*b+i}, -2, v{128+4*i+b}')
    a('''
    s_mov_b64 exec, 0xffff
    buffer_store_dwordx4 v[16:19], v12, s[36:39], s44 offen sc1
    buffer_store_dwordx4 v[20:23], v12, s[36:39], s44 offen offset:256 sc1
    buffer_store_dwordx4 v[24:27], v12, s[36:39], s45 offen sc1
    buffer_store_dwordx4 v[28:31], v12, s[36:39], s45 offen offset:256 sc1
    s_mov_b64 exec, -1
    ''')
    TS(6)
    a('s_cmp_ge_u32 s2, 64')
    a('s_cbranch_scc1 L_h_end')
    a(f'''
    v_lshrrev_b32 v1, 3, v0        ; pg
    v_and_b32 v2, 7, v0            ; pc
    v_lshlrev_b32 v1, 13, v1
    v_lshl_add_u32 v1, v2, 4, v1
    s_lshl_b32 s24, s2, 7
    s_lshl_b32 s25, s23, 18        ; 32hw*8192
    s_add_u32 s24, s24, s25
    s_add_u32 s40, s24, {WS_OP:#x}
    s_add_u32 s41, s40, {8*8192}
    s_add_u32 s42, s40, {16*8192}
    s_add_u32 s43, s40, {24*8192}
    s_mov_b64 s[50:51], -1
    s_mov_b64 s[52:53], -1
    s_mov_b32 s60, {SPIN}
    v_lshlrev_b32 v5, 4, v2
    v_add_u32 v5, {LDS_C+2048}, v5
    s_lshl_b32 s25, s23, 7
    v_add_u32 v6, s25, v5
    s_lshr_b32 s24, s2, 2
    s_lshl_b32 s24, s24, 8         ; b*2048 + region*256
    s_and_b32 s25, s2, 1
    s_lshl_b32 s25, s25, 7
    s_add_u32 s24, s24, s25
    s_and_b32 s25, s2, 2
    s_lshl_b32 s25, s25, 2
    s_add_u32 s24, s24, s25
    v_lshlrev_b32 v7, 4, v2
    ''')
    a.label('L_s3_loop')
    for u in range(4):
        a(f's_mov_b64 exec, s[{50+2*u}:{51+2*u}]')
        a(f's_cbranch_execz L_s3_skip{u}')
        a(f'buffer_load_dwordx4 v[{32+4*u}:{35+4*u}], v1, s[36:39], s{40+u} offen sc1')
        a.label(f'L_s3_skip{u}')
    a('s_mov_b64 exec, -1')
    a('s_waitcnt vmcnt(0)')
    for u in range(4):
        a(f'v_max3_u32 v{48+u}, v{32+4*u}, v{33+4*u}, v{34+4*u}')
    for u in range(4):
        a(f'v_max_u32 v{48+u}, v{48+u}, v{35+4*u}')
    for u in range(4):
        a(f'v_cmp_eq_u32 s[{50+2*u}:{51+2*u}], -1, v{48+u}')
    a(f'''
    s_or_b64 s[58:59], s[50:51], s[52:53]
    s_or_b64 s[48:49], s[54:55], s[56:57]
    s_or_b64 s[58:59], s[58:59], s[48:49]
    s_cbranch_scc0 L_s3_ok
    s_sleep {opt.sleep2}
    s_sub_u32 s60, s60, 1
    s_cmp_lg_u32 s60, 0
    s_cbranch_scc1 L_s3_loop
    ''')
    a.label('L_s3_ok')
    for e in range(4):
        a(f'v_add_f32 v{32+e}, v{32+e}, v{36+e}')
        a(f'v_add_f32 v{40+e}, v{40+e}, v{44+e}')
    for e in range(4):
        a(f'v_add_f32 v{32+e}, v{32+e}, v{40+e}')
    a('s_nop 1')
    for e in range(4):
        a(f'v_add_f32_dpp v{32+e}, v{32+e}, v{32+e} row_ror:8 row_mask:0xf bank_mask:0xf')
    for sw in ('v_permlane16_swap_b32', 'v_permlane32_swap_b32'):
        for e in range(4):
            a(f'v_mov_b32 v{36+e}, v{32+e}')
        a('s_nop 0')
        for e in range(4):
            a(f'{sw} v{32+e}, v{36+e}')
        a('s_nop 0')
        for e in range(4):
            a(f'v_add_f32 v{32+e}, v{32+e}, v{36+e}')
    a('''
    s_mov_b64 exec, 0xff
    ds_write_b128 v6, v[32:35]
    s_waitcnt lgkmcnt(0)
    s_barrier                      ; B4
    s_cmp_lg_u32 s23, 0
    s_cbranch_scc1 L_h_end2
    ''')
    for w in range(4):
        a(f'ds_read_b128 v[{32+4*w}:{35+4*w}], v5 offset:{128*w}')
    a('s_waitcnt lgkmcnt(0)')
    for e in range(4):
        a(f'v_add_f32 v{32+e}, v{32+e}, v{36+e}')
        a(f'v_add_f32 v{40+e}, v{40+e}, v{44+e}')
    for e in range(4):
        a(f'v_add_f32 v{32+e}, v{32+e}, v{40+e}')
    a('''
    v_cvt_pk_bf16_f32 v32, v32, v33
    v_cvt_pk_bf16_f32 v33, v34, v35
    buffer_store_dwordx2 v[32:33], v7, s[32:35], s24 offen
    ''')
    a.label('L_h_end2')
    a('s_mov_b64 exec, -1')
    a.label('L_h_end')
    TS(7)
    TS_flush(8)
    a.label('L_done')
    a('s_endpgm')
    a.raw('.section .rodata,"a"')
    a.raw('.p2align 6')
    a.raw(f'.amdhsa_kernel {NAME}')
    a.raw('  .amdhsa_next_free_vgpr 256')
    a.raw('  .amdhsa_next_free_sgpr 96')
    a.raw('  .amdhsa_accum_offset 256')
    a.raw('  .amdhsa_group_segment_fixed_size 0')
    a.raw('  .amdhsa_kernarg_size 64')
    a.raw('  .amdhsa_user_sgpr_count 2')
    a.raw('  .amdhsa_user_sgpr_kernarg_segment_ptr 1')
    a.raw('  .amdhsa_system_sgpr_workgroup_id_x 1')
    a.raw('.end_amdhsa_kernel')
    return a.text()

if __name__ == '__main__':
    p = argparse.ArgumentParser()
    p.add_argument('out')
    p.add_argument('--ldflag', default='nt')
    p.add_argument('--depth', type=int, default=6)
    p.add_argument('--ts', action='store_true')
    p.add_argument('--sleep1', type=int, default=8)
    p.add_argument('--sleep2', type=int, default=4)
    opt = p.parse_args()
    open(opt.out, 'w').write(gen(opt))
```

```python
import sys, struct, argparse

HEADER = open('standalone__gqa_block_cached__decode.s.ref').read().split('; Override launch')[0]
NAME = 'standalone__gqa_block_cached__decode_kernel'

class A:
    def __init__(self):
        self.l = []
    def __call__(self, s):
        for line in s.strip('\n').split('\n'):
            if line.strip():
                self.l.append('    ' + line.strip())
    def label(self, s):
        self.l.append(s + ':')
    def raw(self, s):
        self.l.append(s)
    def extend(self, lines):
        self.l.extend(lines)
    def text(self):
        return '\n'.join(self.l) + '\n'

WS_QP = 0
WS_PO = 0x20000
WS_ML = WS_PO + 0x100000
WS_OP = WS_ML + 0x4000
WS_TS = WS_OP + 0x100000
WS_END = WS_TS + 0x20000

SCALE_LOG2E = 0.08838834764831845 * 1.4426950408889634
def fbits(f):
    return '0x%08x' % struct.unpack('<I', struct.pack('<f', f))[0]

def srd(a, d, base, nbytes):
    a(f's_mov_b32 s{d}, s{base}')
    a(f's_and_b32 s{d+1}, s{base+1}, 0xffff')
    a(f's_mov_b32 s{d+2}, {nbytes:#x}')
    a(f's_mov_b32 s{d+3}, 0x20000')

SEL_LO, SEL_HI = 90, 91
def perm_pair(a, dst, blk, q, hi):
    sel = SEL_HI if hi else SEL_LO
    for u in range(4):
        a(f'v_perm_b32 v{dst+u}, v{blk+4*(2*u+1)+q}, v{blk+4*(2*u)+q}, s{sel}')

def xlane(a, op, v, t, which):
    sw = 'v_permlane16_swap_b32' if which == 16 else 'v_permlane32_swap_b32'
    a(f'v_mov_b32 v{t}, v{v}\ns_nop 1\n{sw} v{v}, v{t}\ns_nop 1\n{op} v{v}, v{v}, v{t}')

def pingpong(a, tag, issue, nregs, nloads, A0, B0, T0, opt):
    def check(base, dst, cmp):
        regs = list(range(base, base + nregs))
        a(f'v_max3_u32 v{T0}, v{regs[0]}, v{regs[1]}, v{regs[2]}')
        a(f'v_max3_u32 v{T0+1}, v{regs[3]}, v{regs[4]}, v{regs[5]}')
        k = 6
        t = 0
        while k + 1 < nregs:
            a(f'v_max3_u32 v{T0+t}, v{T0+t}, v{regs[k]}, v{regs[k+1]}')
            k += 2
            t ^= 1
        assert k == nregs
        a(f'v_max_u32 v{T0}, v{T0}, v{T0+1}')
        a(f'{cmp} {dst}, -1, v{T0}')
    for r in range(nregs):
        a(f'v_mov_b32 v{B0+r}, -1')
    a('s_mov_b64 s[50:51], -1')
    a(f's_mov_b32 s60, {SPIN}')
    return check

def pingpong_loop(a, tag, issue, nregs, nloads, A0, B0, check, opt):
    issue(A0)
    if opt.pp_sleep:
        a(f's_sleep {opt.pp_sleep}')
    a.label(f'L_{tag}_loop')
    issue(B0)
    a('s_mov_b64 exec, -1')
    a(f's_waitcnt vmcnt({nloads})')
    check(A0, 's[50:51]', 'v_cmp_eq_u32')
    a('s_mov_b64 exec, s[50:51]')
    a(f's_cbranch_execz L_{tag}_ok')
    if opt.pp_lsleep:
        a(f's_sleep {opt.pp_lsleep}')
    issue(A0)
    a('s_mov_b64 exec, -1')
    a(f's_waitcnt vmcnt({nloads})')
    check(B0, 'vcc', 'v_cmp_ne_u32')
    a('s_and_b64 exec, vcc, s[50:51]')
    for r in range(nregs):
        a(f'v_mov_b32 v{A0+r}, v{B0+r}')
    a('s_andn2_b64 exec, s[50:51], vcc')
    a(f's_cbranch_execz L_{tag}_ok')
    if opt.pp_lsleep:
        a(f's_sleep {opt.pp_lsleep}')
    a('s_sub_u32 s60, s60, 1')
    a('s_cmp_lg_u32 s60, 0')
    a(f's_cbranch_scc1 L_{tag}_loop')
    a.label(f'L_{tag}_ok')
    a('s_mov_b64 exec, -1')

LDS_RING = 32768
LDS_Q = 4*LDS_RING
LDS_ML = LDS_Q + 2048
LDS_C = LDS_Q + 4096
LDS_TOTAL = LDS_Q + 8192
KD, KR, QF, SB, OB, KF, VS = 8, 12, 16, 32, 64, 96, 128
SPIN = 400000

def gen(opt):
    a = A()
    ld = opt.ldflag
    def TS(idx, tgt=None):
        if opt.ts:
            (tgt or a)(f's_memrealtime s[62:63]\ns_waitcnt lgkmcnt(0)\ns_mov_b32 s{64+idx}, s62')
    def TS_flush(nidx):
        if opt.ts:
            a(f'''
            s_lshl_b32 s62, s2, 9
            s_lshl_b32 s63, s27, 6
            s_add_u32 s62, s62, s63
            s_add_u32 s62, s62, {WS_TS:#x}
            v_mov_b32 v1, 0
            s_mov_b64 exec, 1
            ''')
            for i in range(nidx):
                a(f'v_mov_b32 v2, s{64+i}\nbuffer_store_dword v2, v1, s[36:39], s62 offen offset:{4*i}\ns_nop 1')
            a('s_mov_b64 exec, -1')

    a.raw(HEADER.rstrip('\n'))
    a.raw(f'; @launch grid=(256,1,1) block=(512,1,1) lds={LDS_TOTAL}')
    a.raw('.amdgcn_target "amdgcn-amd-amdhsa--gfx950"')
    a.raw('.text')
    a.raw(f'.globl {NAME}')
    a.raw('.p2align 8')
    a.raw(f'.type {NAME},@function')
    a.label(NAME)
    a('s_cmp_ge_u32 s2, 256')
    a('s_cbranch_scc1 L_done')
    a('s_load_dwordx16 s[4:19], s[0:1], 0')
    TS(0)
    a(f'''
    s_mov_b32 s{SEL_LO}, 0x05040100
    s_mov_b32 s{SEL_HI}, 0x07060302
    v_lshrrev_b32 v1, 6, v0
    s_lshr_b32 s20, s2, 6          ; hkv
    s_bfe_u32 s21, s2, 0x10005     ; b = (wg>>5)&1
    v_readfirstlane_b32 s23, v1
    s_and_b32 s22, s2, 31          ; split
    v_and_b32 v0, 63, v0           ; lane
    v_and_b32 v3, 15, v0           ; l&15
    v_lshrrev_b32 v4, 4, v0        ; g
    s_mov_b32 s27, s23
    s_cmp_ge_u32 s23, 4
    s_cbranch_scc1 L_helper
    ''')
    a('''
    v_lshlrev_b32 v1, 4, v3
    v_lshl_add_u32 v1, v4, 10, v1  ; vVoff = g*1024 + (l&15)*16
    s_lshl_b32 s51, s21, 2
    s_add_u32 s51, s51, s20
    s_lshl_b32 s52, s51, 19
    s_mov_b32 s53, s52
    s_lshl_b32 s51, s51, 23
    s_lshl_b32 s25, s22, 2
    s_add_u32 s25, s25, s23
    s_lshl_b32 s25, s25, 12
    s_add_u32 s51, s51, s25
    s_add_u32 s24, s51, s52
    s_mov_b32 s25, s24
    s_lshl_b32 s50, s23, 15
    v_lshlrev_b32 v5, 8, v4        ; g*256
    v_lshlrev_b32 v6, 8, v3        ; r*256
    v_add_u32 v6, s50, v6
    ''')
    for i in range(4):
        a(f'v_add_u32 v7, {4*i}, v4')
        a('v_xor_b32 v7, v7, v3')
        a(f'v_lshl_add_u32 v{KD+i}, v7, 4, v5')
        a(f'v_lshl_add_u32 v{KR+i}, v7, 4, v6')
    a('s_waitcnt lgkmcnt(0)')
    srd(a, 28, 6, 0x4000000)
    srd(a, 32, 8, 0x4000000)
    srd(a, 36, 18, WS_END)

    order = [('K', 0), ('K', 1), ('K', 2), ('K', 3), ('V', 0), ('V', 1), ('V', 2), ('V', 3),
             ('K', 4), ('K', 5), ('K', 6), ('K', 7), ('V', 4), ('V', 5), ('V', 6), ('V', 7)]
    last_idx = {}
    for n, key in enumerate(order):
        last_idx[key] = 8*n + 7
    issued = [0]
    def load_pair(blk, pi):
        kind, i = blk
        t = A()
        D = opt.depth1 if issued[0] < opt.switch else opt.depth
        if issued[0] == opt.n0:
            t('s_barrier')
        if issued[0] == opt.n1:
            t(f'v_mov_b32 v2, {LDS_C+4}')
            t('v_mov_b32 v5, 1')
            t('ds_write_b32 v2, v5')
        if issued[0] >= D - 1:
            t(f's_waitcnt vmcnt({D-2})')
        u, jj = pi // 2, (pi % 2)*2
        if kind == 'K':
            if jj == 0:
                t(f's_add_u32 m0, s50, {(i % 4)*8192 + u*4096}')
                t('s_nop 0')
            for j in (jj, jj+1):
                t(f'buffer_load_dwordx4 v{KD+j}, s[28:31], s24 offen offset:{1024*j} {ld} lds')
            if jj == 2:
                t('s_add_u32 s52, s52, 0x80000')
                t('s_and_b32 s52, s52, 0x7fffff')
                t('s_add_u32 s24, s51, s52')
        else:
            base = VS + 32*(i % 4)
            for j in (jj, jj+1):
                r = base + 16*u + 4*j
                t(f'buffer_load_dwordx4 v[{r}:{r+3}], v1, s[32:35], s25 offen offset:{256*j} {ld}')
            if jj == 2:
                t('s_add_u32 s53, s53, 0x80000')
                t('s_and_b32 s53, s53, 0x7fffff')
                t('s_add_u32 s25, s51, s53')
        issued[0] += 2
        return t.l
    def need(key):
        return ('NEED', key)

    def atom_qk(i):
        t = A()
        t.l.append(need(('K', i)))
        for u in range(2):
            for j in range(4):
                t(f'ds_read_b128 v[{KF+16*u+4*j}:{KF+16*u+4*j+3}], v{KR+j} offset:{(i % 4)*8192 + u*4096}')
        for u in range(2):
            t(f's_waitcnt lgkmcnt({4*(1-u)})')
            d = SB + 8*(i % 4) + 4*u
            for j in range(4):
                c = '0' if j == 0 else f'v[{d}:{d+3}]'
                r = KF + 16*u + 4*j
                t(f'v_mfma_f32_16x16x32_bf16 v[{d}:{d+3}], v[{r}:{r+3}], v[{QF+4*j}:{QF+4*j+3}], {c}')
        return t.l
    def atom_softmax(chunk):
        t = A()
        t('s_nop 7')
        t(f'v_max3_f32 v6, v{SB}, v{SB+1}, v{SB+2}')
        t(f'v_max3_f32 v7, v{SB+3}, v{SB+4}, v{SB+5}')
        k = 6
        while k < 32:
            t(f'v_max3_f32 v6, v6, v{SB+k}, v{SB+k+1}')
            if k + 2 < 32:
                t(f'v_max3_f32 v7, v7, v{SB+k+2}, v{SB+k+3}')
            k += 4
        t('v_max_f32 v6, v6, v7')
        t('s_nop 0')
        xlane(t, 'v_max_f32', 6, 7, 32)
        t('s_nop 0')
        xlane(t, 'v_max_f32', 6, 7, 16)
        if chunk == 0:
            t('v_mul_f32 v2, s42, v6')
            t('v_mov_b32 v5, 0')
        else:
            t('v_mul_f32 v6, s42, v6')
            t('v_max_f32 v6, v6, v2')
            t('v_sub_f32 v7, v2, v6')
            t('v_exp_f32 v7, v7              ; alpha')
            t('v_mov_b32 v2, v6')
            t('v_mul_f32 v5, v5, v7')
            for k in range(32):
                t(f'v_mul_f32 v{OB+k}, v{OB+k}, v7')
        t('v_mov_b32 v6, 0')
        for k in range(32):
            t(f'v_fma_f32 v{SB+k}, v{SB+k}, s42, -v2')
        for k in range(32):
            t(f'v_exp_f32 v{SB+k}, v{SB+k}')
        t('s_nop 0')
        for k in range(0, 32, 2):
            t(f'v_add_f32 v5, v5, v{SB+k}')
            t(f'v_add_f32 v6, v6, v{SB+k+1}')
            t(f'v_cvt_pk_bf16_f32 v{SB+k//2}, v{SB+k}, v{SB+k+1}')
        t('v_add_f32 v5, v5, v6')
        return t.l
    def atom_pv(i):
        t = A()
        t.l.append(need(('V', i)))
        base = VS + 32*(i % 4)
        p = SB + 4*(i % 4)
        for q in range(4):
            for hi in range(2):
                e = 2*q + hi
                tmp = KF + 4*(e % 4)
                perm_pair(t, tmp, base, q, hi)
                t('s_nop 1')
                d = OB + 4*e
                c = '0' if i == 0 else f'v[{d}:{d+3}]'
                t(f'v_mfma_f32_16x16x32_bf16 v[{d}:{d+3}], v[{tmp}:{tmp+3}], v[{p}:{p+3}], {c}')
        return t.l
    def emit(lines):
        for ln in lines:
            if isinstance(ln, tuple):
                n = issued[0] - 1 - last_idx[ln[1]]
                assert n >= 0, ln
                a(f's_waitcnt vmcnt({min(n, 63)})')
            else:
                a.raw(ln)
    def segment(blk, atoms):
        lines = [x for at in atoms for x in at]
        n = len(lines)
        cuts = [n*k//4 for k in range(5)]
        for pi in range(4):
            a.extend(load_pair(blk, pi))
            emit(lines[cuts[pi]:cuts[pi+1]])

    for blk in order[:8]:
        segment(blk, [])
    for r in range(16):
        a(f'v_mov_b32 v{QF+r}, 0')
    a(f'''
    v_lshlrev_b32 v7, 8, v3
    v_lshl_add_u32 v7, v4, 4, v7   ; h*256 + 16g
    v_add_u32 v7, {LDS_Q}, v7
    s_mov_b32 s40, 0x00ff00ff
    s_mov_b32 s41, 0x00ff00ff
    s_mov_b32 s42, {fbits(SCALE_LOG2E)}
    ''')
    TS(1)
    a('''
    s_barrier
    s_mov_b64 exec, s[40:41]
    ''')
    for j in range(4):
        a(f'ds_read_b128 v[{QF+4*j}:{QF+4*j+3}], v7 offset:{64*j}')
    a('s_mov_b64 exec, -1')
    TS(2)
    a('s_waitcnt lgkmcnt(0)')
    emit(atom_qk(0))
    segment(('K', 4), [atom_qk(1), atom_qk(2), atom_qk(3)])
    segment(('K', 5), [atom_softmax(0)])
    segment(('K', 6), [atom_pv(0), atom_pv(1)])
    segment(('K', 7), [atom_pv(2), atom_pv(3)])
    TS(3)
    segment(('V', 4), [atom_qk(4), atom_qk(5)])
    segment(('V', 5), [atom_qk(6), atom_qk(7)])
    segment(('V', 6), [atom_softmax(1)])
    t = A()
    t('s_nop 0')
    xlane(t, 'v_add_f32', 5, 6, 32)
    t('s_nop 0')
    xlane(t, 'v_add_f32', 5, 6, 16)
    t(f'''
    v_mov_b32 v6, v2
    v_mov_b32 v7, v5
    s_lshl_b32 s43, s23, 6
    v_lshlrev_b32 v2, 3, v3
    v_add_u32 v2, s43, v2          ; wave*64 + h*8
    v_add_u32 v2, {LDS_ML}, v2
    s_mov_b64 exec, 0xff
    ds_write_b64 v2, v[6:7]
    s_mov_b64 exec, -1
    v_lshlrev_b32 v5, 9, v3
    v_lshl_add_u32 v5, v4, 7, v5   ; h*512 + 128g
    v_add_u32 v5, s50, v5
    s_lshl_b32 s43, s23, 1
    v_lshrrev_b32 v7, 5, v0
    v_add_u32 v7, s43, v7
    v_and_b32 v6, 31, v0           ; quad
    v_lshlrev_b32 v8, 9, v7
    v_lshl_add_u32 v8, v6, 4, v8   ; h*512 + quad*16
    v_lshlrev_b32 v7, 3, v7        ; h*8
    v_add_u32 v7, {LDS_ML}, v7
    s_lshl_b32 s43, s2, 12
    s_add_u32 s43, s43, {WS_PO:#x}
    ''')
    emit(t.l)
    segment(('V', 7), [atom_pv(4), atom_pv(5)])
    TS(4)
    emit(atom_pv(6))
    emit(atom_pv(7))
    TS(5)
    a('s_nop 4')
    a('s_mov_b64 exec, s[40:41]')
    for i in range(8):
        a(f'ds_write_b128 v5, v[{OB+4*i}:{OB+4*i+3}] offset:{16*i}')
    a('s_mov_b64 exec, -1')
    a('s_waitcnt lgkmcnt(0)')
    a('s_barrier')
    for w in range(4):
        a(f'ds_read_b64 v[{40+2*w}:{41+2*w}], v7 offset:{64*w}')
    a(f'v_add_u32 v10, {2*LDS_RING}, v8')
    for w in range(4):
        a(f'ds_read_b128 v[{16+4*w}:{19+4*w}], v{8 if w < 2 else 10} offset:{LDS_RING*(w % 2)}')
    a(f'''
    s_waitcnt lgkmcnt(4)
    v_max_f32 v32, v40, v42
    v_max3_f32 v32, v32, v44, v46   ; M
    v_sub_f32 v40, v40, v32
    v_sub_f32 v42, v42, v32
    v_sub_f32 v44, v44, v32
    v_sub_f32 v46, v46, v32
    v_exp_f32 v40, v40
    v_exp_f32 v42, v42
    v_exp_f32 v44, v44
    v_exp_f32 v46, v46
    s_waitcnt lgkmcnt(0)
    ''')
    for e in range(4):
        a(f'v_mul_f32 v{36+e}, v40, v{16+e}')
    for e in range(4):
        a(f'v_fmac_f32 v{36+e}, v42, v{20+e}')
    for e in range(4):
        a(f'v_fmac_f32 v{36+e}, v44, v{24+e}')
    for e in range(4):
        a(f'v_fmac_f32 v{36+e}, v46, v{28+e}')
    for e in range(4):
        a(f'v_min_u32 v{36+e}, -2, v{36+e}')
    a('''
    buffer_store_dwordx4 v[36:39], v8, s[36:39], s43 offen sc1
    ''')
    TS(6)
    TS(7)
    TS_flush(8)
    a('s_endpgm')

    a.label('L_helper')
    a('''
    s_setprio 3
    s_sub_u32 s23, s23, 4          ; hw
    s_and_b32 s46, s2, 1           ; ch
    s_bfe_u32 s47, s2, 0x50001
    s_lshl_b32 s48, s20, 5
    s_add_u32 s48, s48, s47
    s_waitcnt lgkmcnt(0)
    ''')
    srd(a, 36, 18, WS_END)
    a('''
    s_and_b32 s21, s2, 15          ; cblk
    s_bfe_u32 s22, s2, 0x20004
    v_lshlrev_b32 v1, 4, v0
    s_lshl_b32 s52, s22, 15        ; kq*32768
    s_lshl_b32 s25, s20, 12        ; 1024hkv*4
    s_add_u32 s52, s52, s25
    s_lshl_b32 s25, s21, 8         ; 64cblk*4
    s_add_u32 s52, s52, s25
    s_add_u32 s53, s52, 16384
    s_cmp_eq_u32 s23, 0
    s_cbranch_scc1 L_h0
    s_cmp_eq_u32 s23, 1
    s_cbranch_scc1 L_h1
    ''')
    if opt.touch:
        a('''
        s_cmp_lg_u32 s23, 2
        s_cbranch_scc1 L_h23
        s_bfe_u32 s24, s2, 0x10005     ; b
        s_lshl_b32 s24, s24, 2
        s_add_u32 s24, s24, s20
        s_lshl_b32 s24, s24, 23
        s_and_b32 s25, s2, 31
        s_lshl_b32 s25, s25, 18
        s_add_u32 s24, s24, s25
        v_mov_b32 v8, s24
        s_lshl_b32 s25, s48, 16
        v_mov_b32 v9, s25
        v_mov_b32 v10, 0
        s_mov_b64 exec, 1
        global_load_dword v11, v8, s[8:9]
        global_load_dword v12, v9, s[12:13]
        global_load_dword v13, v10, s[14:15]
        s_mov_b64 exec, -1
        ''')
        a.label('L_h23')
    a('''
    s_barrier                      ; B0
    s_branch L_h_notq
    ''')
    a.label('L_h1')
    a(f'''
    v_mov_b32 v6, 0
    v_mov_b32 v7, {LDS_C}
    ds_write_b32 v7, v6            ; flag = 0
    ds_write_b32 v7, v6 offset:4
    v_mov_b32 v8, -1
    v_mov_b32 v9, -1
    v_mov_b32 v10, -1
    v_mov_b32 v11, -1
    s_lshl_b32 s43, s2, 12
    s_add_u32 s43, s43, {WS_PO:#x}
    s_lshl_b32 s44, s2, 6
    s_add_u32 s44, s44, {WS_ML:#x}
    s_lshl_b32 s24, s48, 13        ; p*8192
    s_lshl_b32 s25, s46, 11        ; ch*2048
    s_add_u32 s24, s24, s25
    s_add_u32 s24, s24, {WS_OP:#x}
    s_add_u32 s25, s24, 4096
    s_mov_b64 exec, 0xffff
    buffer_store_dwordx4 v[8:11], v1, s[36:39], s52 offen sc1
    buffer_store_dwordx4 v[8:11], v1, s[36:39], s53 offen sc1
    s_mov_b64 exec, 0xf
    buffer_store_dwordx4 v[8:11], v1, s[36:39], s44 offen sc1
    s_mov_b64 exec, -1
    ''')
    for i in range(4):
        a(f'buffer_store_dwordx4 v[8:11], v1, s[36:39], s43 offen offset:{1024*i} sc1')
    for i in range(4):
        a(f'buffer_store_dwordx4 v[8:11], v1, s[36:39], s{24 + i//2} offen offset:{1024*(i & 1)} sc1')
    a(f'''
    s_lshl_b32 s26, s20, 6
    v_mov_b32 v2, s26
    v_mov_b32 v5, 1
    v_mov_b32 v6, 2
    v_and_b32 v12, 3, v0
    v_lshlrev_b32 v12, 6, v12
    s_mov_b32 s60, {SPIN}
    s_waitcnt lgkmcnt(0)
    s_barrier                      ; B0
    s_waitcnt vmcnt(0)
    s_mov_b64 exec, 1
    global_atomic_add v2, v5, s[16:17] sc1
    ds_write_b32 v7, v5            ; flag = 1
    s_mov_b64 exec, 0xf
    ''')
    TS(1)
    a('s_mov_b64 exec, -1')
    a('s_branch L_h_notq')
    a.label('L_h0')
    srd(a, 28, 10, 0x800000)
    srd(a, 32, 4, 0x1000)
    a('''
    v_and_b32 v9, 7, v3            ; c
    v_lshrrev_b32 v10, 3, v3       ; a
    v_lshlrev_b32 v5, 18, v10      ; 32a * 8192
    v_lshlrev_b32 v6, 16, v4       ; 8g * 8192
    v_lshlrev_b32 v7, 4, v9        ; 16c
    v_add3_u32 v5, v5, v6, v7
    v_and_b32 v6, 1, v0            ; b = m&1
    v_lshlrev_b32 v6, 11, v6       ; b*2048
    v_bfe_u32 v7, v0, 1, 1         ; a' = (m>>1)&1
    v_lshlrev_b32 v7, 6, v7        ; 64a'
    v_lshlrev_b32 v8, 4, v4        ; 16g
    v_add3_u32 v6, v6, v7, v8
    s_lshl_b32 s24, s22, 21        ; 256kq*8192
    s_lshl_b32 s25, s20, 11        ; 1024hkv*2
    s_add_u32 s24, s24, s25
    s_lshl_b32 s25, s21, 7         ; 64cblk*2
    s_add_u32 s24, s24, s25
    s_lshl_b32 s26, s22, 9
    ''')
    for w in range(4):
        a(f'buffer_load_dwordx4 v[{16+4*w}:{19+4*w}], v6, s[32:35], s26 offen offset:{128*w}')
    for w in range(4):
        for t_ in range(8):
            r = 64 + 32*w + 4*t_
            a(f'buffer_load_dwordx4 v[{r}:{r+3}], v5, s[28:31], s24 offen {ld}')
            a(f's_add_u32 s24, s24, {8192 if t_ < 7 else 8192*57}')
    for w in range(4):
        if w == 0:
            a('s_barrier                      ; B0')
        a(f's_waitcnt vmcnt({8*(3-w)})')
        if w == 3:
            TS(1)
        for q in range(4):
            for hi in range(2):
                i = 2*q + hi
                tmp = 192 + 4*(i % 4)
                perm_pair(a, tmp, 64 + 32*w, q, hi)
                a('s_nop 1')
                c = '0' if w == 0 else f'v[{32+4*i}:{35+4*i}]'
                a(f'v_mfma_f32_16x16x32_bf16 v[{32+4*i}:{35+4*i}], v[{16+4*w}:{19+4*w}], v[{tmp}:{tmp+3}], {c}')
    a('s_nop 7')
    for b in range(2):
        for i in range(8):
            a(f'v_add_f32_dpp v{64+8*b+i}, v{32+4*i+2+b}, v{32+4*i+b} row_ror:8 row_mask:0xf bank_mask:0xf')
    for i in range(16):
        a(f'v_min_u32 v{64+i}, -2, v{64+i}')
    a(f'''
    v_mov_b32 v7, {LDS_C}
    s_mov_b32 s60, {SPIN}
    ''')
    a.label('L_h0_flag1')
    a('''
    ds_read_b32 v8, v7
    s_waitcnt lgkmcnt(0)
    v_cmp_le_u32 vcc, 1, v8
    s_cbranch_vccnz L_h0_flag1_ok
    s_sleep 1
    s_sub_u32 s60, s60, 1
    s_cmp_lg_u32 s60, 0
    s_cbranch_scc1 L_h0_flag1
    ''')
    a.label('L_h0_flag1_ok')
    a('''
    s_mov_b64 exec, 0xff
    buffer_store_dwordx4 v[64:67], v1, s[36:39], s52 offen sc1
    buffer_store_dwordx4 v[68:71], v1, s[36:39], s52 offen offset:128 sc1
    buffer_store_dwordx4 v[72:75], v1, s[36:39], s53 offen sc1
    buffer_store_dwordx4 v[76:79], v1, s[36:39], s53 offen offset:128 sc1
    s_mov_b64 exec, -1
    ''')
    TS(2)
    a(f'''
    s_mov_b32 s60, {SPIN}
    s_bfe_u32 s21, s2, 0x10005     ; b
    s_lshl_b32 s24, s21, 14        ; b*16384
    s_lshl_b32 s25, s20, 12        ; hkv*1024*4
    s_add_u32 s52, s24, s25
    s_add_u32 s53, s52, 32768
    s_add_u32 s54, s52, 65536
    s_add_u32 s55, s52, 98304
    v_and_b32 v6, 7, v0
    v_lshlrev_b32 v6, 4, v6
    v_lshl_add_u32 v6, v4, 7, v6
    v_bfe_u32 v7, v0, 3, 1
    v_lshl_add_u32 v6, v7, 3, v6
    v_add_u32 v6, {LDS_Q}, v6
    v_mov_b32 v7, {LDS_C}
    ''')
    a.label('L_h0_flag2')
    a('''
    ds_read_b32 v8, v7 offset:4
    s_waitcnt lgkmcnt(0)
    v_cmp_eq_u32 vcc, 1, v8
    s_cbranch_vccnz L_h0_flag2_ok
    s_sleep 2
    s_sub_u32 s60, s60, 1
    s_cmp_lg_u32 s60, 0
    s_cbranch_scc1 L_h0_flag2
    ''')
    a.label('L_h0_flag2_ok')
    a(f'''
    s_mov_b32 s60, {SPIN}
    v_and_b32 v12, 3, v0
    v_lshlrev_b32 v12, 6, v12
    s_mov_b64 exec, 0xf
    ''')
    a.label('L_h0_poll')
    a(f'''
    global_load_dword v8, v12, s[16:17] sc1
    s_waitcnt vmcnt(0)
    v_cmp_gt_u32 vcc, 64, v8
    s_cbranch_vccz L_h0_flag_ok
    s_sleep {opt.sleep1}
    s_sub_u32 s60, s60, 1
    s_cmp_lg_u32 s60, 0
    s_cbranch_scc1 L_h0_poll
    ''')
    a.label('L_h0_flag_ok')
    a('s_mov_b64 exec, -1')
    a(f's_mov_b32 s60, {SPIN}')
    TS(3)
    a.label('L_h1_gather')
    for kq in range(4):
        for u in range(4):
            r = 16 + 16*kq + 4*u
            a(f'buffer_load_dwordx4 v[{r}:{r+3}], v1, s[36:39], s{52+kq} offen offset:{1024*u} sc1')
    a('s_waitcnt vmcnt(0)')
    a('v_max3_u32 v8, v16, v17, v18')
    a('v_max3_u32 v9, v19, v20, v21')
    for k in range(22, 78, 4):
        a(f'v_max3_u32 v8, v8, v{k}, v{k+1}')
        a(f'v_max3_u32 v9, v9, v{k+2}, v{k+3}')
    a(f'''
    v_max3_u32 v8, v8, v78, v79
    v_max_u32 v8, v8, v9
    v_cmp_eq_u32 vcc, -1, v8
    s_cbranch_vccz L_h1_got
    s_sleep {opt.sleep1}
    s_sub_u32 s60, s60, 1
    s_cmp_lg_u32 s60, 0
    s_cbranch_scc1 L_h1_gather
    ''')
    a.label('L_h1_got')
    for e in range(16):
        a(f'v_add_f32 v{16+e}, v{16+e}, v{32+e}')
        a(f'v_add_f32 v{48+e}, v{48+e}, v{64+e}')
    for e in range(16):
        a(f'v_add_f32 v{16+e}, v{16+e}, v{48+e}')
    for e in range(8):
        a(f'v_cvt_pk_bf16_f32 v{16+e}, v{16+2*e}, v{17+2*e}')
    for u in range(4):
        a(f'ds_write_b64 v6, v[{16+2*u}:{17+2*u}] offset:{512*u}')
    a('s_waitcnt lgkmcnt(0)')
    TS(4)
    a.label('L_h_notq')
    a('s_setprio 0')
    a('s_barrier                      ; B1')
    srd(a, 28, 12, 0x800000)
    srd(a, 32, 14, 4096)
    a('''
    v_lshlrev_b32 v1, 4, v3
    v_lshl_add_u32 v1, v4, 12, v1  ; 2g*2048 + 16n'
    s_lshl_b32 s24, s48, 16
    s_lshl_b32 s25, s46, 10        ; 512ch*2
    s_add_u32 s24, s24, s25
    s_lshl_b32 s25, s23, 8         ; 128w*2
    s_add_u32 s24, s24, s25
    ''')
    for t_ in range(8):
        a(f's_add_u32 s25, s24, {(8*(t_&3) + (t_>>2))*2048}')
        a(f'buffer_load_dwordx4 v[{64+4*t_}:{67+4*t_}], v1, s[28:31], s25 offen {ld}')
    a(f'''
    v_bfe_u32 v5, v0, 3, 1         ; b
    v_lshl_add_u32 v5, v5, 5, v4   ; 32b + sg4
    v_and_b32 v7, 7, v0            ; pc
    v_lshlrev_b32 v6, 12, v5       ; *4096
    v_lshl_add_u32 v6, v7, 4, v6   ; + pc*16
    v_lshlrev_b32 v7, 6, v5        ; *64 (ML)
    s_lshl_b32 s24, s20, 18        ; 64hkv*4096
    s_lshl_b32 s25, s47, 7
    s_add_u32 s24, s24, s25
    s_lshl_b32 s25, s23, 15        ; 8hw*4096
    s_add_u32 s24, s24, s25
    s_add_u32 s40, s24, {WS_PO:#x}
    s_add_u32 s41, s40, {4*4096}
    s_lshl_b32 s26, s20, 12        ; 64hkv*64
    s_lshr_b32 s25, s47, 2
    s_lshl_b32 s25, s25, 3         ; hh*8
    s_add_u32 s26, s26, s25
    s_lshl_b32 s25, s23, 9         ; 8hw*64
    s_add_u32 s26, s26, s25
    s_add_u32 s26, s26, {WS_ML:#x}
    v_lshlrev_b32 v8, 4, v3
    s_lshl_b32 s25, s23, 9
    s_add_u32 s25, s25, {LDS_C}
    v_add_u32 v8, s25, v8
    v_bfe_u32 v9, v0, 3, 1
    v_lshlrev_b32 v9, 3, v9
    v_add_u32 v9, s25, v9
    v_and_b32 v10, 1, v0
    v_lshlrev_b32 v11, 3, v10
    v_add_u32 v11, {LDS_C}, v11
    v_lshlrev_b32 v10, 7, v10
    v_lshl_add_u32 v10, v4, 5, v10
    v_add_u32 v10, {LDS_C}, v10
    v_lshlrev_b32 v12, 4, v3
    s_lshl_b32 s44, s48, 13
    s_lshl_b32 s25, s46, 11
    s_add_u32 s44, s44, s25
    s_lshl_b32 s25, s23, 9
    s_add_u32 s44, s44, s25
    s_add_u32 s44, s44, {WS_OP:#x}
    s_add_u32 s45, s44, 4096
    s_mov_b64 s[50:51], -1
    s_mov_b64 s[52:53], -1
    s_mov_b64 s[54:55], -1
    s_mov_b64 s[56:57], -1
    s_mov_b32 s60, {SPIN}
    s_waitcnt vmcnt(0)
    ''')
    for q in range(4):
        for hi in range(2):
            perm_pair(a, 96 + 4*(2*q+hi), 64, q, hi)
    def issue2(base):
        for k in range(2):
            a(f'buffer_load_dwordx4 v[{base+4*k}:{base+3+4*k}], v6, s[36:39], s{40+k} offen sc1')
            a(f'buffer_load_dwordx2 v[{base+8+2*k}:{base+9+2*k}], v7, s[36:39], s26 offen offset:{256*k} sc1')
    chk2 = pingpong(a, 's2', issue2, 12, 4, 160, 176, 28, opt)
    a(f'''
    v_and_b32 v13, 7, v0
    v_lshlrev_b32 v13, 3, v13      ; (l&7)*8
    v_add_u32 v14, {LDS_ML}, v13
    s_lshl_b32 s42, s2, 6
    s_add_u32 s42, s42, {WS_ML:#x}
    ''')
    a('s_barrier                      ; B2')
    a('s_cmp_lg_u32 s23, 3')
    a('s_cbranch_scc1 L_no_ml')
    for w in range(4):
        a(f'ds_read_b64 v[{40+2*w}:{41+2*w}], v14 offset:{64*w}')
    a('''
    s_waitcnt lgkmcnt(0)
    v_max_f32 v32, v40, v42
    v_max3_f32 v32, v32, v44, v46   ; M
    v_sub_f32 v40, v40, v32
    v_sub_f32 v42, v42, v32
    v_sub_f32 v44, v44, v32
    v_sub_f32 v46, v46, v32
    v_exp_f32 v40, v40
    v_exp_f32 v42, v42
    v_exp_f32 v44, v44
    v_exp_f32 v46, v46
    v_min_u32 v32, -2, v32
    v_mul_f32 v33, v40, v41
    v_fmac_f32 v33, v42, v43
    v_fmac_f32 v33, v44, v45
    v_fmac_f32 v33, v46, v47        ; L
    v_min_u32 v33, -2, v33
    s_mov_b64 exec, 0xff
    buffer_store_dwordx2 v[32:33], v13, s[36:39], s42 offen sc1
    s_mov_b64 exec, -1
    ''')
    a.label('L_no_ml')
    pingpong_loop(a, 's2', issue2, 12, 4, 160, 176, chk2, opt)
    TS(5)
    a('v_max_f32 v32, v168, v170')
    a('s_nop 0')
    xlane(a, 'v_max_f32', 32, 33, 16)
    a('s_nop 0')
    xlane(a, 'v_max_f32', 32, 33, 32)
    a('''
    v_sub_f32 v24, v168, v32
    v_sub_f32 v26, v170, v32
    v_exp_f32 v24, v24
    v_exp_f32 v26, v26
    s_nop 0
    v_mul_f32 v33, v24, v169
    ''')
    for e in range(4):
        a(f'v_mul_f32 v{36+e}, v24, v{160+e}')
    a('v_fmac_f32 v33, v26, v171')
    for e in range(4):
        a(f'v_fmac_f32 v{36+e}, v26, v{164+e}')
    vals = [33, 36, 37, 38, 39]
    for sw in ('v_permlane16_swap_b32', 'v_permlane32_swap_b32'):
        for i, v in enumerate(vals):
            a(f'v_mov_b32 v{40+i}, v{v}')
        a('s_nop 0')
        for i, v in enumerate(vals):
            a(f'{sw} v{v}, v{40+i}')
        a('s_nop 0')
        for i, v in enumerate(vals):
            a(f'v_add_f32 v{v}, v{v}, v{40+i}')
    a('''
    s_mov_b64 exec, 0xffff
    ds_write_b128 v8, v[36:39]
    s_mov_b64 exec, 0x101
    ds_write_b64 v9, v[32:33] offset:256
    s_mov_b64 exec, -1
    s_waitcnt lgkmcnt(0)
    s_barrier
    ''')
    for w in range(4):
        a(f'ds_read_b64 v[{16+2*w}:{17+2*w}], v11 offset:{512*w+256}')
    for w in range(4):
        a(f'ds_read_b128 v[{24+8*w}:{27+8*w}], v10 offset:{512*w}')
        a(f'ds_read_b128 v[{28+8*w}:{31+8*w}], v10 offset:{512*w+16}')
    a('''
    s_waitcnt lgkmcnt(8)
    v_max_f32 v56, v16, v18
    v_max3_f32 v56, v56, v20, v22
    v_sub_f32 v16, v16, v56
    v_sub_f32 v18, v18, v56
    v_sub_f32 v20, v20, v56
    v_sub_f32 v22, v22, v56
    v_exp_f32 v16, v16
    v_exp_f32 v18, v18
    v_exp_f32 v20, v20
    v_exp_f32 v22, v22
    s_nop 0
    v_mul_f32 v57, v16, v17
    v_fmac_f32 v57, v18, v19
    v_fmac_f32 v57, v20, v21
    v_fmac_f32 v57, v22, v23
    v_rcp_f32 v57, v57
    s_nop 0
    v_mul_f32 v16, v16, v57
    v_mul_f32 v18, v18, v57
    v_mul_f32 v20, v20, v57
    v_mul_f32 v22, v22, v57
    s_waitcnt lgkmcnt(0)
    ''')
    for e in range(8):
        a(f'v_mul_f32 v{24+e}, v16, v{24+e}')
    for w in range(1, 4):
        for e in range(8):
            a(f'v_fmac_f32 v{24+e}, v{16+2*w}, v{24+8*w+e}')
    for e in range(4):
        a(f'v_cvt_pk_bf16_f32 v{60+e}, v{24+2*e}, v{25+2*e}')
    a('s_nop 1')
    for i in range(8):
        a(f'v_mfma_f32_16x16x32_bf16 v[{128+4*i}:{131+4*i}], v[60:63], v[{96+4*i}:{99+4*i}], 0')
    a('s_nop 1')
    for i in range(8):
        for b in range(2):
            a(f'v_min_u32 v{16+8*b+i}, -2, v{128+4*i+b}')
    a('''
    s_mov_b64 exec, 0xffff
    buffer_store_dwordx4 v[16:19], v12, s[36:39], s44 offen sc1
    buffer_store_dwordx4 v[20:23], v12, s[36:39], s44 offen offset:256 sc1
    buffer_store_dwordx4 v[24:27], v12, s[36:39], s45 offen sc1
    buffer_store_dwordx4 v[28:31], v12, s[36:39], s45 offen offset:256 sc1
    s_mov_b64 exec, -1
    ''')
    TS(6)
    a('s_cmp_ge_u32 s2, 64')
    a('s_cbranch_scc1 L_h_end')
    a(f'''
    v_lshrrev_b32 v1, 3, v0        ; pg
    v_and_b32 v2, 7, v0            ; pc
    v_lshlrev_b32 v1, 13, v1
    v_lshl_add_u32 v1, v2, 4, v1
    s_lshl_b32 s24, s2, 7
    s_lshl_b32 s25, s23, 18        ; 32hw*8192
    s_add_u32 s24, s24, s25
    s_add_u32 s40, s24, {WS_OP:#x}
    s_add_u32 s41, s40, {8*8192}
    s_add_u32 s42, s40, {16*8192}
    s_add_u32 s43, s40, {24*8192}
    v_lshlrev_b32 v5, 4, v2
    v_add_u32 v5, {LDS_C+2048}, v5
    s_lshl_b32 s25, s23, 7
    v_add_u32 v6, s25, v5
    s_lshr_b32 s24, s2, 2
    s_lshl_b32 s24, s24, 8         ; b*2048 + region*256
    s_and_b32 s25, s2, 1
    s_lshl_b32 s25, s25, 7
    s_add_u32 s24, s24, s25
    s_and_b32 s25, s2, 2
    s_lshl_b32 s25, s25, 2
    s_add_u32 s24, s24, s25
    v_lshlrev_b32 v7, 4, v2
    ''')
    def issue3(base):
        for u in range(4):
            a(f'buffer_load_dwordx4 v[{base+4*u}:{base+3+4*u}], v1, s[36:39], s{40+u} offen sc1')
    chk3 = pingpong(a, 's3', issue3, 16, 4, 192, 208, 48, opt)
    pingpong_loop(a, 's3', issue3, 16, 4, 192, 208, chk3, opt)
    for e in range(4):
        a(f'v_add_f32 v{32+e}, v{192+e}, v{196+e}')
        a(f'v_add_f32 v{40+e}, v{200+e}, v{204+e}')
    for e in range(4):
        a(f'v_add_f32 v{32+e}, v{32+e}, v{40+e}')
    a('s_nop 1')
    for e in range(4):
        a(f'v_add_f32_dpp v{32+e}, v{32+e}, v{32+e} row_ror:8 row_mask:0xf bank_mask:0xf')
    for sw in ('v_permlane16_swap_b32', 'v_permlane32_swap_b32'):
        for e in range(4):
            a(f'v_mov_b32 v{36+e}, v{32+e}')
        a('s_nop 0')
        for e in range(4):
            a(f'{sw} v{32+e}, v{36+e}')
        a('s_nop 0')
        for e in range(4):
            a(f'v_add_f32 v{32+e}, v{32+e}, v{36+e}')
    a('''
    s_mov_b64 exec, 0xff
    ds_write_b128 v6, v[32:35]
    s_waitcnt lgkmcnt(0)
    s_barrier                      ; B4
    s_cmp_lg_u32 s23, 0
    s_cbranch_scc1 L_h_end2
    ''')
    for w in range(4):
        a(f'ds_read_b128 v[{32+4*w}:{35+4*w}], v5 offset:{128*w}')
    a('s_waitcnt lgkmcnt(0)')
    for e in range(4):
        a(f'v_add_f32 v{32+e}, v{32+e}, v{36+e}')
        a(f'v_add_f32 v{40+e}, v{40+e}, v{44+e}')
    for e in range(4):
        a(f'v_add_f32 v{32+e}, v{32+e}, v{40+e}')
    a('''
    v_cvt_pk_bf16_f32 v32, v32, v33
    v_cvt_pk_bf16_f32 v33, v34, v35
    buffer_store_dwordx2 v[32:33], v7, s[32:35], s24 offen
    ''')
    a.label('L_h_end2')
    a('s_mov_b64 exec, -1')
    a.label('L_h_end')
    TS(7)
    TS_flush(8)
    a.label('L_done')
    a('s_endpgm')
    a.raw('.section .rodata,"a"')
    a.raw('.p2align 6')
    a.raw(f'.amdhsa_kernel {NAME}')
    a.raw('  .amdhsa_next_free_vgpr 256')
    a.raw('  .amdhsa_next_free_sgpr 96')
    a.raw('  .amdhsa_accum_offset 256')
    a.raw('  .amdhsa_group_segment_fixed_size 0')
    a.raw('  .amdhsa_kernarg_size 64')
    a.raw('  .amdhsa_user_sgpr_count 2')
    a.raw('  .amdhsa_user_sgpr_kernarg_segment_ptr 1')
    a.raw('  .amdhsa_system_sgpr_workgroup_id_x 1')
    a.raw('.end_amdhsa_kernel')
    return a.text()

if __name__ == '__main__':
    p = argparse.ArgumentParser()
    p.add_argument('out')
    p.add_argument('--ldflag', default='nt')
    p.add_argument('--depth', type=int, default=6)
    p.add_argument('--ts', action='store_true')
    p.add_argument('--pp_lsleep', type=int, default=0)
    p.add_argument('--touch', type=int, default=0)
    p.add_argument('--pp_sleep', type=int, default=5)
    p.add_argument('--n1', type=int, default=24)
    p.add_argument('--depth1', type=int, default=6)
    p.add_argument('--switch', type=int, default=32)
    p.add_argument('--n0', type=int, default=4)
    p.add_argument('--b0w', type=int, default=0)
    p.add_argument('--noq', action='store_true')
    p.add_argument('--sleep1', type=int, default=8)
    p.add_argument('--sleep2', type=int, default=4)
    opt = p.parse_args()
    open(opt.out, 'w').write(gen(opt))
```

```python
import sys, struct, argparse

HEADER = open('standalone__gqa_block_cached__decode.s.ref').read().split('; Override launch')[0]
NAME = 'standalone__gqa_block_cached__decode_kernel'

class A:
    def __init__(self):
        self.l = []
    def __call__(self, s):
        for line in s.strip('\n').split('\n'):
            if line.strip():
                self.l.append('    ' + line.strip())
    def label(self, s):
        self.l.append(s + ':')
    def raw(self, s):
        self.l.append(s)
    def extend(self, lines):
        self.l.extend(lines)
    def text(self):
        return '\n'.join(self.l) + '\n'

WS_QP = 0
WS_TS = 0x224000
WS_OP = 0x20000
WS_PO = 0x280000
WS_END = WS_PO + 0x200000

SCALE_LOG2E = 0.08838834764831845 * 1.4426950408889634
def fbits(f):
    return '0x%08x' % struct.unpack('<I', struct.pack('<f', f))[0]

def srd(a, d, base, nbytes):
    a(f's_mov_b32 s{d}, s{base}')
    a(f's_and_b32 s{d+1}, s{base+1}, 0xffff')
    a(f's_mov_b32 s{d+2}, {nbytes:#x}')
    a(f's_mov_b32 s{d+3}, 0x20000')

SEL_LO, SEL_HI = 90, 91
def perm_pair(a, dst, blk, q, hi):
    sel = SEL_HI if hi else SEL_LO
    for u in range(4):
        a(f'v_perm_b32 v{dst+u}, v{blk+4*(2*u+1)+q}, v{blk+4*(2*u)+q}, s{sel}')

def xlane(a, op, v, t, which):
    sw = 'v_permlane16_swap_b32' if which == 16 else 'v_permlane32_swap_b32'
    a(f'v_mov_b32 v{t}, v{v}\ns_nop 1\n{sw} v{v}, v{t}\ns_nop 1\n{op} v{v}, v{v}, v{t}')

def pingpong(a, tag, issue, nregs, nloads, A0, B0, T0, opt):
    def check(base, dst, cmp):
        regs = list(range(base, base + nregs))
        a(f'v_max3_u32 v{T0}, v{regs[0]}, v{regs[1]}, v{regs[2]}')
        a(f'v_max3_u32 v{T0+1}, v{regs[3]}, v{regs[4]}, v{regs[5]}')
        k = 6
        t = 0
        while k + 1 < nregs:
            a(f'v_max3_u32 v{T0+t}, v{T0+t}, v{regs[k]}, v{regs[k+1]}')
            k += 2
            t ^= 1
        assert k == nregs
        a(f'v_max_u32 v{T0}, v{T0}, v{T0+1}')
        a(f'{cmp} {dst}, -1, v{T0}')
    for r in range(nregs):
        a(f'v_mov_b32 v{B0+r}, -1')
    a('s_mov_b64 s[50:51], -1')
    a(f's_mov_b32 s60, {SPIN}')
    return check

def pingpong_loop(a, tag, issue, nregs, nloads, A0, B0, check, opt):
    issue(A0)
    if opt.pp_sleep:
        a(f's_sleep {opt.pp_sleep}')
    a.label(f'L_{tag}_loop')
    issue(B0)
    a('s_mov_b64 exec, -1')
    a(f's_waitcnt vmcnt({nloads})')
    check(A0, 's[50:51]', 'v_cmp_eq_u32')
    a('s_mov_b64 exec, s[50:51]')
    a(f's_cbranch_execz L_{tag}_ok')
    if opt.pp_lsleep:
        a(f's_sleep {opt.pp_lsleep}')
    issue(A0)
    a('s_mov_b64 exec, -1')
    a(f's_waitcnt vmcnt({nloads})')
    check(B0, 'vcc', 'v_cmp_ne_u32')
    a('s_and_b64 exec, vcc, s[50:51]')
    for r in range(nregs):
        a(f'v_mov_b32 v{A0+r}, v{B0+r}')
    a('s_andn2_b64 exec, s[50:51], vcc')
    a(f's_cbranch_execz L_{tag}_ok')
    if opt.pp_lsleep:
        a(f's_sleep {opt.pp_lsleep}')
    a('s_sub_u32 s60, s60, 1')
    a('s_cmp_lg_u32 s60, 0')
    a(f's_cbranch_scc1 L_{tag}_loop')
    a.label(f'L_{tag}_ok')
    a('s_mov_b64 exec, -1')

LDS_RING = 32768
LDS_Q = 4*LDS_RING
LDS_ML = LDS_Q + 2048
LDS_PW = LDS_Q + 2432
LDS_MB = LDS_Q + 2560
LDS_C = LDS_Q + 4096
LDS_TOTAL = LDS_Q + 8192
KD, KR, QF, SB, OB, KF, VS = 8, 12, 16, 32, 64, 96, 128
SPIN = 400000

def gen(opt):
    a = A()
    ld = opt.ldflag
    def TS(idx, tgt=None):
        if opt.ts:
            (tgt or a)(f's_memrealtime s[62:63]\ns_waitcnt lgkmcnt(0)\ns_mov_b32 s{64+idx}, s62')
    def TS_flush(nidx):
        if opt.ts:
            a(f'''
            s_lshl_b32 s62, s2, 9
            s_lshl_b32 s63, s27, 6
            s_add_u32 s62, s62, s63
            s_add_u32 s62, s62, {WS_TS:#x}
            v_mov_b32 v1, 0
            s_mov_b64 exec, 1
            ''')
            for i in range(nidx):
                a(f'v_mov_b32 v2, s{64+i}\nbuffer_store_dword v2, v1, s[36:39], s62 offen offset:{4*i}\ns_nop 1')
            a('s_mov_b64 exec, -1')

    a.raw(HEADER.rstrip('\n'))
    a.raw(f'; @launch grid=(256,1,1) block=(512,1,1) lds={LDS_TOTAL}')
    a.raw('.amdgcn_target "amdgcn-amd-amdhsa--gfx950"')
    a.raw('.text')
    a.raw(f'.globl {NAME}')
    a.raw('.p2align 8')
    a.raw(f'.type {NAME},@function')
    a.label(NAME)
    a('s_cmp_ge_u32 s2, 256')
    a('s_cbranch_scc1 L_done')
    a('s_load_dwordx16 s[4:19], s[0:1], 0')
    TS(0)
    a(f'''
    s_mov_b32 s{SEL_LO}, 0x05040100
    s_mov_b32 s{SEL_HI}, 0x07060302
    v_lshrrev_b32 v1, 6, v0
    s_lshr_b32 s20, s2, 6          ; hkv
    s_bfe_u32 s21, s2, 0x10005     ; b = (wg>>5)&1
    v_readfirstlane_b32 s23, v1
    s_and_b32 s22, s2, 31          ; split
    v_and_b32 v0, 63, v0           ; lane
    v_and_b32 v3, 15, v0           ; l&15
    v_lshrrev_b32 v4, 4, v0        ; g
    s_mov_b32 s27, s23
    s_cmp_ge_u32 s23, 4
    s_cbranch_scc1 L_helper
    ''')
    a('''
    v_lshlrev_b32 v1, 4, v3
    v_lshl_add_u32 v1, v4, 10, v1  ; vVoff = g*1024 + (l&15)*16
    s_lshl_b32 s51, s21, 2
    s_add_u32 s51, s51, s20
    s_lshl_b32 s52, s51, 19
    s_mov_b32 s53, s52
    s_add_u32 s55, s51, NS_TILES
    s_lshl_b32 s51, s51, 23
    s_lshl_b32 s25, s23, 12
    s_add_u32 s54, s51, s25
    s_mov_b32 s58, LOOKAHEAD
    s_lshl_b32 s25, s22, 2
    s_add_u32 s25, s25, s23
    s_lshl_b32 s25, s25, 12
    s_add_u32 s51, s51, s25
    s_add_u32 s24, s51, s52
    s_mov_b32 s25, s24
    s_lshl_b32 s50, s23, 15
    v_lshlrev_b32 v5, 8, v4        ; g*256
    v_lshlrev_b32 v6, 8, v3        ; r*256
    v_add_u32 v6, s50, v6
    ''')
    for i in range(4):
        a(f'v_add_u32 v7, {4*i}, v4')
        a('v_xor_b32 v7, v7, v3')
        a(f'v_lshl_add_u32 v{KD+i}, v7, 4, v5')
        a(f'v_lshl_add_u32 v{KR+i}, v7, 4, v6')
    a('s_waitcnt lgkmcnt(0)')
    srd(a, 28, 6, 0x4000000)
    srd(a, 32, 8, 0x4000000)
    srd(a, 36, 18, WS_END)

    order = [('K', 0), ('K', 1), ('K', 2), ('K', 3), ('V', 0), ('V', 1), ('V', 2), ('V', 3),
             ('K', 4), ('K', 5), ('V', 4), ('V', 5)]
    NSB = opt.nsb
    if NSB == 7:
        order = order[:8] + [('K', 4), ('K', 5), ('K', 6), ('V', 4), ('V', 5), ('V', 6)]
    NS = 2*NSB
    NT = (16 - NS)*32
    last_idx = {}
    for n, key in enumerate(order):
        last_idx[key] = 8*n + 7
    issued = [0]
    def load_pair(blk, pi):
        kind, i = blk
        t = A()
        D = opt.depth1 if issued[0] < opt.switch else opt.depth
        if issued[0] == opt.n0:
            t('s_barrier')
        if issued[0] == opt.n1:
            t(f'v_mov_b32 v2, {LDS_C+4}')
            t('v_mov_b32 v5, 1')
            t('ds_write_b32 v2, v5')
        if issued[0] >= D - 1:
            t(f's_waitcnt vmcnt({D-2})')
        u, jj = pi // 2, (pi % 2)*2
        if kind == 'K':
            if jj == 0:
                t(f's_add_u32 m0, s50, {(i % 4)*8192 + u*4096}')
                t('s_nop 0')
            for j in (jj, jj+1):
                t(f'buffer_load_dwordx4 v{KD+j}, s[28:31], s24 offen offset:{1024*j} {ld} lds')
            if jj == 2:
                t('s_add_u32 s52, s52, 0x80000')
                t('s_and_b32 s52, s52, 0x7fffff')
                t('s_add_u32 s24, s51, s52')
        else:
            base = VS + 32*(i % 4)
            for j in (jj, jj+1):
                r = base + 16*u + 4*j
                t(f'buffer_load_dwordx4 v[{r}:{r+3}], v1, s[32:35], s25 offen offset:{256*j} {ld}')
            if jj == 2:
                t('s_add_u32 s53, s53, 0x80000')
                t('s_and_b32 s53, s53, 0x7fffff')
                t('s_add_u32 s25, s51, s53')
        issued[0] += 2
        return t.l
    def need(key):
        return ('NEED', key)

    def atom_qk(i):
        t = A()
        t.l.append(need(('K', i)))
        for u in range(2):
            for j in range(4):
                t(f'ds_read_b128 v[{KF+16*u+4*j}:{KF+16*u+4*j+3}], v{KR+j} offset:{(i % 4)*8192 + u*4096}')
        for u in range(2):
            t(f's_waitcnt lgkmcnt({4*(1-u)})')
            d = SB + 8*(i % 4) + 4*u
            for j in range(4):
                c = '0' if j == 0 else f'v[{d}:{d+3}]'
                r = KF + 16*u + 4*j
                t(f'v_mfma_f32_16x16x32_bf16 v[{d}:{d+3}], v[{r}:{r+3}], v[{QF+4*j}:{QF+4*j+3}], {c}')
        return t.l
    def atom_softmax(chunk, n=32):
        t = A()
        t('s_nop 7')
        t(f'v_max3_f32 v6, v{SB}, v{SB+1}, v{SB+2}')
        t(f'v_max3_f32 v7, v{SB+3}, v{SB+4}, v{SB+5}')
        k = 6
        while k < n:
            t(f'v_max3_f32 v6, v6, v{SB+k}, v{SB+k+1}')
            if k + 2 < n:
                t(f'v_max3_f32 v7, v7, v{SB+k+2}, v{SB+k+3}')
            k += 4
        t('v_max_f32 v6, v6, v7')
        t('s_nop 0')
        xlane(t, 'v_max_f32', 6, 7, 32)
        t('s_nop 0')
        xlane(t, 'v_max_f32', 6, 7, 16)
        if chunk == 0:
            t('v_mul_f32 v2, s42, v6')
            t('v_mov_b32 v5, 0')
        else:
            t('v_mul_f32 v6, s42, v6')
            t('v_max_f32 v6, v6, v2')
            t('v_sub_f32 v7, v2, v6')
            t('v_exp_f32 v7, v7              ; alpha')
            t('v_mov_b32 v2, v6')
            t('v_mul_f32 v5, v5, v7')
            for k in range(32):
                t(f'v_mul_f32 v{OB+k}, v{OB+k}, v7')
        t('v_mov_b32 v6, 0')
        for k in range(n):
            t(f'v_fma_f32 v{SB+k}, v{SB+k}, s42, -v2')
        for k in range(n):
            t(f'v_exp_f32 v{SB+k}, v{SB+k}')
        t('s_nop 0')
        for k in range(0, n, 2):
            t(f'v_add_f32 v5, v5, v{SB+k}')
            t(f'v_add_f32 v6, v6, v{SB+k+1}')
            t(f'v_cvt_pk_bf16_f32 v{SB+k//2}, v{SB+k}, v{SB+k+1}')
        t('v_add_f32 v5, v5, v6')
        return t.l
    def atom_pv(i):
        t = A()
        t.l.append(need(('V', i)))
        base = VS + 32*(i % 4)
        p = SB + 4*(i % 4)
        for q in range(4):
            for hi in range(2):
                e = 2*q + hi
                tmp = KF + 4*(e % 4)
                perm_pair(t, tmp, base, q, hi)
                t('s_nop 1')
                d = OB + 4*e
                c = '0' if i == 0 else f'v[{d}:{d+3}]'
                t(f'v_mfma_f32_16x16x32_bf16 v[{d}:{d+3}], v[{tmp}:{tmp+3}], v[{p}:{p+3}], {c}')
        return t.l
    def emit(lines):
        for ln in lines:
            if isinstance(ln, tuple):
                n = issued[0] - 1 - last_idx[ln[1]]
                assert n >= 0, ln
                a(f's_waitcnt vmcnt({min(n, 63)})')
            else:
                a.raw(ln)
    def segment(blk, atoms):
        lines = [x for at in atoms for x in at]
        n = len(lines)
        cuts = [n*k//4 for k in range(5)]
        for pi in range(4):
            a.extend(load_pair(blk, pi))
            emit(lines[cuts[pi]:cuts[pi+1]])

    for blk in order[:8]:
        segment(blk, [])
    for r in range(16):
        a(f'v_mov_b32 v{QF+r}, 0')
    a(f'''
    v_lshlrev_b32 v7, 8, v3
    v_lshl_add_u32 v7, v4, 4, v7   ; h*256 + 16g
    v_add_u32 v7, {LDS_Q}, v7
    s_mov_b32 s40, 0x00ff00ff
    s_mov_b32 s41, 0x00ff00ff
    s_mov_b32 s42, {fbits(SCALE_LOG2E)}
    ''')
    TS(1)
    a('''
    s_barrier
    s_mov_b64 exec, s[40:41]
    ''')
    for j in range(4):
        a(f'ds_read_b128 v[{QF+4*j}:{QF+4*j+3}], v7 offset:{64*j}')
    a('s_mov_b64 exec, -1')
    TS(2)
    a('s_waitcnt lgkmcnt(0)')
    emit(atom_qk(0))
    segment(('K', 4), [atom_qk(1), atom_qk(2), atom_qk(3)])
    segment(('K', 5), [atom_softmax(0), atom_pv(0)])
    if NSB == 6:
        segment(('V', 4), [atom_pv(1), atom_pv(2), atom_pv(3)])
    else:
        segment(('K', 6), [atom_pv(1), atom_pv(2)])
        segment(('V', 4), [atom_pv(3), atom_qk(4)])
    TS(3)
    def request0():
        a(f'''
        v_mov_b32 v6, {LDS_PW}
        v_mov_b32 v7, {opt.la}
        s_mov_b32 s59, {SPIN}
        s_cmp_lg_u32 s23, 0
        s_cbranch_scc1 L_noreq0
        ds_write_b32 v6, v7
        ''')
        a.label('L_noreq0')
    if NSB == 6:
        request0()
        segment(('V', 5), [atom_qk(4), atom_qk(5)])
    else:
        segment(('V', 5), [atom_qk(5), atom_qk(6)])
        request0()
        segment(('V', 6), [atom_softmax(1, 24)])
    a(f'v_mov_b32 v120, {LDS_MB}')
    a(f'v_mov_b32 v121, {LDS_PW}')
    DSL = 8192*(NSB % 4)
    DV = VS + 32*(NSB % 4)
    DS_, DP = SB + 24, SB + 28
    def dyn_issue(slot, tag):
        a.label(f'L_mb{tag}')
        a(f'''
        ds_read_b32 v122, v120
        s_waitcnt lgkmcnt(0)
        v_readfirstlane_b32 s56, v122
        s_cmp_lg_u32 s56, -1
        s_cbranch_scc1 L_mb{tag}_ok
        s_sleep 1
        s_sub_u32 s59, s59, 1
        s_cmp_lg_u32 s59, 0
        s_cbranch_scc1 L_mb{tag}
        ''')
        a.label(f'L_mb{tag}_ok')
        a(f'''
        v_add_u32 v120, 4, v120
        s_cmp_lt_u32 s56, {NT}
        s_cselect_b32 s57, 1, 0
        s_cselect_b32 s24, s23, 1
        s_cmp_lg_u32 s24, 0
        s_cbranch_scc1 L_mb{tag}_nr
        s_add_u32 s58, s58, 1
        v_mov_b32 v122, s58
        ds_write_b32 v121, v122
        ''')
        a.label(f'L_mb{tag}_nr')
        a(f'''
        s_lshr_b32 s24, s56, 5
        s_add_u32 s24, s24, s55
        s_and_b32 s24, s24, 15
        s_lshl_b32 s24, s24, 19
        s_add_u32 s24, s24, s54
        s_and_b32 s25, s56, 31
        s_lshl_b32 s25, s25, 14
        s_add_u32 s24, s24, s25
        s_add_u32 m0, s50, {DSL + 4096*slot}
        s_cmp_lg_u32 s57, 0
        s_cselect_b32 s24, s24, 0x7ff00000
        ''')
        for j in range(4):
            a(f'buffer_load_dwordx4 v{KD+j}, s[28:31], s24 offen offset:{1024*j} {ld} lds')
        for j in range(4):
            r = DV + 16*slot + 4*j
            a(f'buffer_load_dwordx4 v[{r}:{r+3}], v1, s[32:35], s24 offen offset:{256*j} {ld}')
    def dyn_compute(slot, tag):
        a('s_waitcnt vmcnt(12)')
        for j in range(4):
            a(f'ds_read_b128 v[{KF+4*j}:{KF+4*j+3}], v{KR+j} offset:{DSL + 4096*slot}')
        for j in range(4):
            a(f's_waitcnt lgkmcnt({3-j})')
            c = '0' if j == 0 else f'v[{DS_}:{DS_+3}]'
            a(f'v_mfma_f32_16x16x32_bf16 v[{DS_}:{DS_+3}], v[{KF+4*j}:{KF+4*j+3}], v[{QF+4*j}:{QF+4*j+3}], {c}')
        a('s_nop 7')
        a(f'v_max3_f32 v6, v{DS_}, v{DS_+1}, v{DS_+2}')
        a(f'v_max_f32 v6, v6, v{DS_+3}')
        a('s_nop 0')
        xlane(a, 'v_max_f32', 6, 7, 32)
        a('s_nop 0')
        xlane(a, 'v_max_f32', 6, 7, 16)
        a(f'''
        v_mul_f32 v6, s42, v6
        v_cmp_gt_f32 vcc, v6, v2
        s_cbranch_vccz L_nors{tag}
        v_max_f32 v6, v6, v2
        v_sub_f32 v7, v2, v6
        v_exp_f32 v7, v7
        v_mov_b32 v2, v6
        v_mul_f32 v5, v5, v7
        ''')
        for k in range(32):
            a(f'v_mul_f32 v{OB+k}, v{OB+k}, v7')
        a.label(f'L_nors{tag}')
        for k in range(4):
            a(f'v_fma_f32 v{DS_+k}, v{DS_+k}, s42, -v2')
        for k in range(4):
            a(f'v_exp_f32 v{DS_+k}, v{DS_+k}')
        a(f'''
        s_waitcnt vmcnt(8)
        v_add_f32 v6, v{DS_}, v{DS_+1}
        v_add_f32 v7, v{DS_+2}, v{DS_+3}
        v_cvt_pk_bf16_f32 v{DP}, v{DS_}, v{DS_+1}
        v_cvt_pk_bf16_f32 v{DP+1}, v{DS_+2}, v{DS_+3}
        v_add_f32 v5, v5, v6
        v_add_f32 v5, v5, v7
        ''')
        base = DV + 16*slot
        for q in range(4):
            for hi in range(2):
                e = 2*q + hi
                tmp = KF + 16 + 2*(e % 4)
                sel = SEL_HI if hi else SEL_LO
                a(f'v_perm_b32 v{tmp}, v{base+4+q}, v{base+q}, s{sel}')
                a(f'v_perm_b32 v{tmp+1}, v{base+12+q}, v{base+8+q}, s{sel}')
                a('s_nop 1')
                d = OB + 4*e
                a(f'v_mfma_f32_16x16x16_bf16 v[{d}:{d+3}], v[{tmp}:{tmp+1}], v[{DP}:{DP+1}], v[{d}:{d+3}]')
    dyn_issue(0, 'a')
    issued[0] += 8
    if NSB == 6:
        emit(atom_softmax(1, 16))
    for i in range(4, NSB):
        emit(atom_pv(i))
    TS(4)
    a('s_cmp_eq_u32 s57, 0')
    a('s_cbranch_scc1 L_dyn_done')
    a.label('L_dyn_loop')
    dyn_issue(1, 'b')
    dyn_compute(0, 'b')
    a('s_cmp_eq_u32 s57, 0')
    a('s_cbranch_scc1 L_dyn_done')
    dyn_issue(0, 'c')
    dyn_compute(1, 'c')
    a('s_cmp_lg_u32 s57, 0')
    a('s_cbranch_scc1 L_dyn_loop')
    a.label('L_dyn_done')
    TS(5)
    t = A()
    t('s_nop 0')
    xlane(t, 'v_add_f32', 5, 6, 32)
    t('s_nop 0')
    xlane(t, 'v_add_f32', 5, 6, 16)
    t(f'''
    v_mov_b32 v6, v2
    v_mov_b32 v7, v5
    s_lshl_b32 s43, s23, 6
    v_lshlrev_b32 v2, 3, v3
    v_add_u32 v2, s43, v2          ; wave*64 + h*8
    v_add_u32 v2, {LDS_ML}, v2
    s_mov_b64 exec, 0xff
    ds_write_b64 v2, v[6:7]
    s_mov_b64 exec, -1
    v_lshlrev_b32 v5, 9, v3
    v_lshl_add_u32 v5, v4, 7, v5   ; h*512 + 128g
    v_add_u32 v5, s50, v5
    s_lshl_b32 s43, s23, 1
    v_lshrrev_b32 v7, 5, v0
    v_add_u32 v7, s43, v7
    v_and_b32 v6, 31, v0           ; quad
    v_lshlrev_b32 v8, 9, v7
    v_lshl_add_u32 v8, v6, 4, v8   ; h*512 + quad*16
    v_lshlrev_b32 v7, 3, v7        ; h*8
    v_add_u32 v7, {LDS_ML}, v7
    s_lshl_b32 s43, s2, 13
    s_add_u32 s43, s43, {WS_PO:#x}
    s_add_u32 s44, s43, 4096
    ''')
    emit(t.l)
    a('s_mov_b64 exec, s[40:41]')
    for i in range(8):
        a(f'ds_write_b128 v5, v[{OB+4*i}:{OB+4*i+3}] offset:{16*i}')
    a('s_mov_b64 exec, -1')
    a('s_waitcnt lgkmcnt(0)')
    a('s_barrier')
    for w in range(4):
        a(f'ds_read_b64 v[{40+2*w}:{41+2*w}], v7 offset:{64*w}')
    a(f'v_add_u32 v10, {2*LDS_RING}, v8')
    for w in range(4):
        a(f'ds_read_b128 v[{16+4*w}:{19+4*w}], v{8 if w < 2 else 10} offset:{LDS_RING*(w % 2)}')
    a(f'''
    s_waitcnt lgkmcnt(4)
    v_max_f32 v32, v40, v42
    v_max3_f32 v32, v32, v44, v46   ; M
    v_sub_f32 v40, v40, v32
    v_sub_f32 v42, v42, v32
    v_sub_f32 v44, v44, v32
    v_sub_f32 v46, v46, v32
    v_exp_f32 v40, v40
    v_exp_f32 v42, v42
    v_exp_f32 v44, v44
    v_exp_f32 v46, v46
    v_min_u32 v32, -2, v32
    v_mul_f32 v33, v40, v41
    v_fmac_f32 v33, v42, v43
    v_fmac_f32 v33, v44, v45
    v_fmac_f32 v33, v46, v47        ; L
    v_mov_b32 v34, v32
    v_min_u32 v33, -2, v33
    v_mov_b32 v35, v33
    buffer_store_dwordx4 v[32:35], v8, s[36:39], s44 offen sc1
    s_waitcnt lgkmcnt(0)
    ''')
    for e in range(4):
        a(f'v_mul_f32 v{36+e}, v40, v{16+e}')
    for e in range(4):
        a(f'v_fmac_f32 v{36+e}, v42, v{20+e}')
    for e in range(4):
        a(f'v_fmac_f32 v{36+e}, v44, v{24+e}')
    for e in range(4):
        a(f'v_fmac_f32 v{36+e}, v46, v{28+e}')
    for e in range(4):
        a(f'v_min_u32 v{36+e}, -2, v{36+e}')
    a('''
    buffer_store_dwordx4 v[36:39], v8, s[36:39], s43 offen sc1
    ''')
    if opt.b2b:
        a('s_barrier')
    TS(6)
    TS(7)
    TS_flush(8)
    a('s_endpgm')

    a.label('L_helper')
    a('''
    s_setprio 3
    s_sub_u32 s23, s23, 4          ; hw
    s_and_b32 s46, s2, 1           ; ch
    s_bfe_u32 s47, s2, 0x50001
    s_lshl_b32 s48, s20, 5
    s_add_u32 s48, s48, s47
    s_waitcnt lgkmcnt(0)
    ''')
    srd(a, 36, 18, WS_END)
    a('''
    s_and_b32 s21, s2, 15          ; cblk
    s_bfe_u32 s22, s2, 0x20004
    v_lshlrev_b32 v1, 4, v0
    s_lshl_b32 s52, s22, 15        ; kq*32768
    s_lshl_b32 s25, s20, 12        ; 1024hkv*4
    s_add_u32 s52, s52, s25
    s_lshl_b32 s25, s21, 8         ; 64cblk*4
    s_add_u32 s52, s52, s25
    s_add_u32 s53, s52, 16384
    s_cmp_eq_u32 s23, 0
    s_cbranch_scc1 L_h0
    s_cmp_eq_u32 s23, 1
    s_cbranch_scc1 L_h1
    ''')
    if opt.touch:
        a('''
        s_cmp_lg_u32 s23, 2
        s_cbranch_scc1 L_h23
        s_bfe_u32 s24, s2, 0x10005     ; b
        s_lshl_b32 s24, s24, 2
        s_add_u32 s24, s24, s20
        s_lshl_b32 s24, s24, 23
        s_and_b32 s25, s2, 31
        s_lshl_b32 s25, s25, 18
        s_add_u32 s24, s24, s25
        v_mov_b32 v8, s24
        s_lshl_b32 s25, s48, 16
        v_mov_b32 v9, s25
        v_mov_b32 v10, 0
        s_mov_b64 exec, 1
        global_load_dword v11, v8, s[8:9]
        global_load_dword v12, v9, s[12:13]
        global_load_dword v13, v10, s[14:15]
        s_mov_b64 exec, -1
        ''')
        a.label('L_h23')
    a('''
    s_barrier                      ; B0
    s_branch L_h_notq
    ''')
    a.label('L_h1')
    a(f'''
    v_mov_b32 v6, 0
    v_mov_b32 v7, {LDS_C}
    ds_write_b32 v7, v6            ; flag = 0
    ds_write_b32 v7, v6 offset:4
    v_mov_b32 v9, {LDS_PW}
    ds_write_b32 v9, v6
    v_mov_b32 v8, -1
    v_lshlrev_b32 v9, 2, v0
    v_add_u32 v9, {LDS_MB}, v9
    ds_write_b32 v9, v8
    ds_write_b32 v9, v8 offset:256
    ds_write_b32 v9, v8 offset:512
    ds_write_b32 v9, v8 offset:768
    v_mov_b32 v9, -1
    v_mov_b32 v10, -1
    v_mov_b32 v11, -1
    s_lshl_b32 s43, s2, 13
    s_add_u32 s43, s43, {WS_PO:#x}
    s_add_u32 s44, s43, 4096
    s_lshl_b32 s24, s48, 13        ; p*8192
    s_lshl_b32 s25, s46, 11        ; ch*2048
    s_add_u32 s24, s24, s25
    s_add_u32 s24, s24, {WS_OP:#x}
    s_add_u32 s25, s24, 4096
    s_mov_b64 exec, 0xffff
    buffer_store_dwordx4 v[8:11], v1, s[36:39], s52 offen sc1
    buffer_store_dwordx4 v[8:11], v1, s[36:39], s53 offen sc1
    s_mov_b64 exec, -1
    ''')
    for i in range(8):
        a(f'buffer_store_dwordx4 v[8:11], v1, s[36:39], s{43 + i//4} offen offset:{1024*(i % 4)} sc1')
    for i in range(4):
        a(f'buffer_store_dwordx4 v[8:11], v1, s[36:39], s{24 + i//2} offen offset:{1024*(i & 1)} sc1')
    a(f'''
    s_lshl_b32 s26, s20, 6
    v_mov_b32 v2, s26
    v_mov_b32 v5, 1
    v_mov_b32 v6, 2
    v_and_b32 v12, 3, v0
    v_lshlrev_b32 v12, 6, v12
    s_mov_b32 s60, {SPIN}
    s_waitcnt lgkmcnt(0)
    s_barrier                      ; B0
    s_waitcnt vmcnt(0)
    s_mov_b64 exec, 1
    global_atomic_add v2, v5, s[16:17] sc1
    ds_write_b32 v7, v5            ; flag = 1
    s_mov_b64 exec, 0xf
    ''')
    TS(1)
    a('s_mov_b64 exec, -1')
    a('s_branch L_h_notq')
    a.label('L_h0')
    srd(a, 28, 10, 0x800000)
    srd(a, 32, 4, 0x1000)
    a('''
    v_and_b32 v9, 7, v3            ; c
    v_lshrrev_b32 v10, 3, v3       ; a
    v_lshlrev_b32 v5, 18, v10      ; 32a * 8192
    v_lshlrev_b32 v6, 16, v4       ; 8g * 8192
    v_lshlrev_b32 v7, 4, v9        ; 16c
    v_add3_u32 v5, v5, v6, v7
    v_and_b32 v6, 1, v0            ; b = m&1
    v_lshlrev_b32 v6, 11, v6       ; b*2048
    v_bfe_u32 v7, v0, 1, 1         ; a' = (m>>1)&1
    v_lshlrev_b32 v7, 6, v7        ; 64a'
    v_lshlrev_b32 v8, 4, v4        ; 16g
    v_add3_u32 v6, v6, v7, v8
    s_lshl_b32 s24, s22, 21        ; 256kq*8192
    s_lshl_b32 s25, s20, 11        ; 1024hkv*2
    s_add_u32 s24, s24, s25
    s_lshl_b32 s25, s21, 7         ; 64cblk*2
    s_add_u32 s24, s24, s25
    s_lshl_b32 s26, s22, 9
    ''')
    for w in range(4):
        a(f'buffer_load_dwordx4 v[{16+4*w}:{19+4*w}], v6, s[32:35], s26 offen offset:{128*w}')
    for w in range(4):
        for t_ in range(8):
            r = 64 + 32*w + 4*t_
            a(f'buffer_load_dwordx4 v[{r}:{r+3}], v5, s[28:31], s24 offen {ld}')
            a(f's_add_u32 s24, s24, {8192 if t_ < 7 else 8192*57}')
    for w in range(4):
        if w == 0:
            a('s_barrier                      ; B0')
        a(f's_waitcnt vmcnt({8*(3-w)})')
        if w == 3:
            TS(1)
        for q in range(4):
            for hi in range(2):
                i = 2*q + hi
                tmp = 192 + 4*(i % 4)
                perm_pair(a, tmp, 64 + 32*w, q, hi)
                a('s_nop 1')
                c = '0' if w == 0 else f'v[{32+4*i}:{35+4*i}]'
                a(f'v_mfma_f32_16x16x32_bf16 v[{32+4*i}:{35+4*i}], v[{16+4*w}:{19+4*w}], v[{tmp}:{tmp+3}], {c}')
    a('s_nop 7')
    for b in range(2):
        for i in range(8):
            a(f'v_add_f32_dpp v{64+8*b+i}, v{32+4*i+2+b}, v{32+4*i+b} row_ror:8 row_mask:0xf bank_mask:0xf')
    for i in range(16):
        a(f'v_min_u32 v{64+i}, -2, v{64+i}')
    a(f'''
    v_mov_b32 v7, {LDS_C}
    s_mov_b32 s60, {SPIN}
    ''')
    a.label('L_h0_flag1')
    a('''
    ds_read_b32 v8, v7
    s_waitcnt lgkmcnt(0)
    v_cmp_le_u32 vcc, 1, v8
    s_cbranch_vccnz L_h0_flag1_ok
    s_sleep 1
    s_sub_u32 s60, s60, 1
    s_cmp_lg_u32 s60, 0
    s_cbranch_scc1 L_h0_flag1
    ''')
    a.label('L_h0_flag1_ok')
    a('''
    s_mov_b64 exec, 0xff
    buffer_store_dwordx4 v[64:67], v1, s[36:39], s52 offen sc1
    buffer_store_dwordx4 v[68:71], v1, s[36:39], s52 offen offset:128 sc1
    buffer_store_dwordx4 v[72:75], v1, s[36:39], s53 offen sc1
    buffer_store_dwordx4 v[76:79], v1, s[36:39], s53 offen offset:128 sc1
    s_mov_b64 exec, -1
    ''')
    TS(2)
    a(f'''
    s_mov_b32 s60, {SPIN}
    s_bfe_u32 s21, s2, 0x10005     ; b
    s_lshl_b32 s24, s21, 14        ; b*16384
    s_lshl_b32 s25, s20, 12        ; hkv*1024*4
    s_add_u32 s52, s24, s25
    s_add_u32 s53, s52, 32768
    s_add_u32 s54, s52, 65536
    s_add_u32 s55, s52, 98304
    v_and_b32 v6, 7, v0
    v_lshlrev_b32 v6, 4, v6
    v_lshl_add_u32 v6, v4, 7, v6
    v_bfe_u32 v7, v0, 3, 1
    v_lshl_add_u32 v6, v7, 3, v6
    v_add_u32 v6, {LDS_Q}, v6
    v_mov_b32 v7, {LDS_C}
    ''')
    a.label('L_h0_flag2')
    a('''
    ds_read_b32 v8, v7 offset:4
    s_waitcnt lgkmcnt(0)
    v_cmp_eq_u32 vcc, 1, v8
    s_cbranch_vccnz L_h0_flag2_ok
    s_sleep 2
    s_sub_u32 s60, s60, 1
    s_cmp_lg_u32 s60, 0
    s_cbranch_scc1 L_h0_flag2
    ''')
    a.label('L_h0_flag2_ok')
    a(f'''
    s_mov_b32 s60, {SPIN}
    v_and_b32 v12, 3, v0
    v_lshlrev_b32 v12, 6, v12
    s_mov_b64 exec, 0xf
    ''')
    a.label('L_h0_poll')
    a(f'''
    global_load_dword v8, v12, s[16:17] sc1
    s_waitcnt vmcnt(0)
    v_cmp_gt_u32 vcc, 64, v8
    s_cbranch_vccz L_h0_flag_ok
    s_sleep {opt.sleep1}
    s_sub_u32 s60, s60, 1
    s_cmp_lg_u32 s60, 0
    s_cbranch_scc1 L_h0_poll
    ''')
    a.label('L_h0_flag_ok')
    a('s_mov_b64 exec, -1')
    a(f's_mov_b32 s60, {SPIN}')
    TS(3)
    a.label('L_h1_gather')
    for kq in range(4):
        for u in range(4):
            r = 16 + 16*kq + 4*u
            a(f'buffer_load_dwordx4 v[{r}:{r+3}], v1, s[36:39], s{52+kq} offen offset:{1024*u} sc1')
    a('s_waitcnt vmcnt(0)')
    a('v_max3_u32 v8, v16, v17, v18')
    a('v_max3_u32 v9, v19, v20, v21')
    for k in range(22, 78, 4):
        a(f'v_max3_u32 v8, v8, v{k}, v{k+1}')
        a(f'v_max3_u32 v9, v9, v{k+2}, v{k+3}')
    a(f'''
    v_max3_u32 v8, v8, v78, v79
    v_max_u32 v8, v8, v9
    v_cmp_eq_u32 vcc, -1, v8
    s_cbranch_vccz L_h1_got
    s_sleep {opt.sleep1}
    s_sub_u32 s60, s60, 1
    s_cmp_lg_u32 s60, 0
    s_cbranch_scc1 L_h1_gather
    ''')
    a.label('L_h1_got')
    for e in range(16):
        a(f'v_add_f32 v{16+e}, v{16+e}, v{32+e}')
        a(f'v_add_f32 v{48+e}, v{48+e}, v{64+e}')
    for e in range(16):
        a(f'v_add_f32 v{16+e}, v{16+e}, v{48+e}')
    for e in range(8):
        a(f'v_cvt_pk_bf16_f32 v{16+e}, v{16+2*e}, v{17+2*e}')
    for u in range(4):
        a(f'ds_write_b64 v6, v[{16+2*u}:{17+2*u}] offset:{512*u}')
    a('s_waitcnt lgkmcnt(0)')
    TS(4)
    a.label('L_h_notq')
    a('s_setprio 0')
    if opt.wo_early:
        a(f'''
        v_mov_b32 v7, {LDS_C}
        s_mov_b32 s60, {SPIN}
        ''')
        a.label('L_wo_wait')
        a('''
        ds_read_b32 v8, v7 offset:4
        s_waitcnt lgkmcnt(0)
        v_cmp_eq_u32 vcc, 1, v8
        s_cbranch_vccnz L_wo_go
        s_sleep 4
        s_sub_u32 s60, s60, 1
        s_cmp_lg_u32 s60, 0
        s_cbranch_scc1 L_wo_wait
        ''')
        a.label('L_wo_go')
    else:
        a('s_barrier                      ; B1')
    srd(a, 28, 12, 0x800000)
    srd(a, 32, 14, 4096)
    a('''
    v_lshlrev_b32 v1, 4, v3
    v_lshl_add_u32 v1, v4, 12, v1  ; 2g*2048 + 16n'
    s_lshl_b32 s24, s48, 16
    s_lshl_b32 s25, s46, 10        ; 512ch*2
    s_add_u32 s24, s24, s25
    s_lshl_b32 s25, s23, 8         ; 128w*2
    s_add_u32 s24, s24, s25
    ''')
    for t_ in range(8):
        a(f's_add_u32 s25, s24, {(8*(t_&3) + (t_>>2))*2048}')
        a(f'buffer_load_dwordx4 v[{64+4*t_}:{67+4*t_}], v1, s[28:31], s25 offen {ld}')
    if opt.wo_early:
        a('s_barrier                      ; B1')
    a(f'''
    v_bfe_u32 v5, v0, 3, 1         ; b
    v_lshl_add_u32 v5, v5, 5, v4   ; 32b + sg4
    v_and_b32 v7, 7, v0            ; pc
    v_lshlrev_b32 v6, 13, v5       ; *8192
    v_lshl_add_u32 v6, v7, 4, v6   ; + pc*16
    s_lshl_b32 s24, s20, 19        ; 64hkv*8192
    s_lshl_b32 s25, s47, 7
    s_add_u32 s24, s24, s25
    s_lshl_b32 s25, s23, 16        ; 8hw*8192
    s_add_u32 s24, s24, s25
    s_add_u32 s40, s24, {WS_PO:#x}
    s_add_u32 s41, s40, {4*8192}
    s_add_u32 s42, s40, 4096
    s_add_u32 s43, s41, 4096
    v_lshlrev_b32 v8, 4, v3
    s_lshl_b32 s25, s23, 9
    s_add_u32 s25, s25, {LDS_C}
    v_add_u32 v8, s25, v8
    v_bfe_u32 v9, v0, 3, 1
    v_lshlrev_b32 v9, 3, v9
    v_add_u32 v9, s25, v9
    v_and_b32 v10, 1, v0
    v_lshlrev_b32 v11, 3, v10
    v_add_u32 v11, {LDS_C}, v11
    v_lshlrev_b32 v10, 7, v10
    v_lshl_add_u32 v10, v4, 5, v10
    v_add_u32 v10, {LDS_C}, v10
    v_lshlrev_b32 v12, 4, v3
    s_lshl_b32 s44, s48, 13
    s_lshl_b32 s25, s46, 11
    s_add_u32 s44, s44, s25
    s_lshl_b32 s25, s23, 9
    s_add_u32 s44, s44, s25
    s_add_u32 s44, s44, {WS_OP:#x}
    s_add_u32 s45, s44, 4096
    s_mov_b64 s[50:51], -1
    s_mov_b64 s[52:53], -1
    s_mov_b64 s[54:55], -1
    s_mov_b64 s[56:57], -1
    s_mov_b32 s60, {SPIN}
    s_waitcnt vmcnt(0)
    ''')
    for q in range(4):
        for hi in range(2):
            perm_pair(a, 96 + 4*(2*q+hi), 64, q, hi)
    def issue2(base):
        for k in range(2):
            a(f'buffer_load_dwordx4 v[{base+4*k}:{base+3+4*k}], v6, s[36:39], s{40+k} offen sc1')
            a(f'buffer_load_dwordx2 v[{base+8+2*k}:{base+9+2*k}], v6, s[36:39], s{42+k} offen sc1')
    chk2 = pingpong(a, 's2', issue2, 12, 4, 160, 176, 28, opt)
    a(f'''
    s_cmp_lg_u32 s23, 2
    s_cbranch_scc1 L_no_tk
    s_bfe_u32 s24, s2, 0x10005     ; b
    s_lshl_b32 s24, s24, 2         ; (r>>2)*4
    s_lshl_b32 s25, s20, 6         ; (r&3)*64
    s_add_u32 s24, s24, s25
    s_add_u32 s24, s24, 32
    v_mov_b32 v21, s24
    v_mov_b32 v22, 1
    v_mov_b32 v23, {LDS_PW}
    v_mov_b32 v24, {LDS_MB}
    s_mov_b32 s61, 0
    s_mov_b32 s59, {4*SPIN}
    s_mov_b64 exec, 1
    ''')
    a.label('L_tk')
    a(f'''
    ds_read_b32 v20, v23
    s_waitcnt lgkmcnt(0)
    v_readfirstlane_b32 s24, v20
    s_cmp_gt_u32 s24, s61
    s_cbranch_scc1 L_tk_go
    s_sleep 1
    s_sub_u32 s59, s59, 1
    s_cmp_lg_u32 s59, 0
    s_cbranch_scc1 L_tk
    s_branch L_tk_end
    ''')
    a.label('L_tk_go')
    a(f'''
    global_atomic_add v20, v21, v22, s[16:17] sc0 sc1
    s_add_u32 s61, s61, 1
    s_waitcnt vmcnt(0)
    ds_write_b32 v24, v20
    v_add_u32 v24, 4, v24
    v_readfirstlane_b32 s24, v20
    s_cmp_lt_u32 s24, {NT}
    s_cbranch_scc1 L_tk
    ''')
    a.label('L_tk_end')
    a('s_mov_b64 exec, -1')
    a('s_waitcnt lgkmcnt(0)')
    a.label('L_no_tk')
    a('s_barrier                      ; B2')
    if opt.b2b:
        a('s_barrier                      ; B2b')
    pingpong_loop(a, 's2', issue2, 12, 4, 160, 176, chk2, opt)
    TS(5)
    a('v_max_f32 v32, v168, v170')
    a('s_nop 0')
    xlane(a, 'v_max_f32', 32, 33, 16)
    a('s_nop 0')
    xlane(a, 'v_max_f32', 32, 33, 32)
    a('''
    v_sub_f32 v24, v168, v32
    v_sub_f32 v26, v170, v32
    v_exp_f32 v24, v24
    v_exp_f32 v26, v26
    s_nop 0
    v_mul_f32 v33, v24, v169
    ''')
    for e in range(4):
        a(f'v_mul_f32 v{36+e}, v24, v{160+e}')
    a('v_fmac_f32 v33, v26, v171')
    for e in range(4):
        a(f'v_fmac_f32 v{36+e}, v26, v{164+e}')
    vals = [33, 36, 37, 38, 39]
    for sw in ('v_permlane16_swap_b32', 'v_permlane32_swap_b32'):
        for i, v in enumerate(vals):
            a(f'v_mov_b32 v{40+i}, v{v}')
        a('s_nop 0')
        for i, v in enumerate(vals):
            a(f'{sw} v{v}, v{40+i}')
        a('s_nop 0')
        for i, v in enumerate(vals):
            a(f'v_add_f32 v{v}, v{v}, v{40+i}')
    a('''
    s_mov_b64 exec, 0xffff
    ds_write_b128 v8, v[36:39]
    s_mov_b64 exec, 0x101
    ds_write_b64 v9, v[32:33] offset:256
    s_mov_b64 exec, -1
    s_waitcnt lgkmcnt(0)
    s_barrier
    ''')
    for w in range(4):
        a(f'ds_read_b64 v[{16+2*w}:{17+2*w}], v11 offset:{512*w+256}')
    for w in range(4):
        a(f'ds_read_b128 v[{24+8*w}:{27+8*w}], v10 offset:{512*w}')
        a(f'ds_read_b128 v[{28+8*w}:{31+8*w}], v10 offset:{512*w+16}')
    a('''
    s_waitcnt lgkmcnt(8)
    v_max_f32 v56, v16, v18
    v_max3_f32 v56, v56, v20, v22
    v_sub_f32 v16, v16, v56
    v_sub_f32 v18, v18, v56
    v_sub_f32 v20, v20, v56
    v_sub_f32 v22, v22, v56
    v_exp_f32 v16, v16
    v_exp_f32 v18, v18
    v_exp_f32 v20, v20
    v_exp_f32 v22, v22
    s_nop 0
    v_mul_f32 v57, v16, v17
    v_fmac_f32 v57, v18, v19
    v_fmac_f32 v57, v20, v21
    v_fmac_f32 v57, v22, v23
    v_rcp_f32 v57, v57
    s_nop 0
    v_mul_f32 v16, v16, v57
    v_mul_f32 v18, v18, v57
    v_mul_f32 v20, v20, v57
    v_mul_f32 v22, v22, v57
    s_waitcnt lgkmcnt(0)
    ''')
    for e in range(8):
        a(f'v_mul_f32 v{24+e}, v16, v{24+e}')
    for w in range(1, 4):
        for e in range(8):
            a(f'v_fmac_f32 v{24+e}, v{16+2*w}, v{24+8*w+e}')
    for e in range(4):
        a(f'v_cvt_pk_bf16_f32 v{60+e}, v{24+2*e}, v{25+2*e}')
    a('s_nop 1')
    for i in range(8):
        a(f'v_mfma_f32_16x16x32_bf16 v[{128+4*i}:{131+4*i}], v[60:63], v[{96+4*i}:{99+4*i}], 0')
    a('s_nop 1')
    for i in range(8):
        for b in range(2):
            a(f'v_min_u32 v{16+8*b+i}, -2, v{128+4*i+b}')
    a('''
    s_mov_b64 exec, 0xffff
    buffer_store_dwordx4 v[16:19], v12, s[36:39], s44 offen sc1
    buffer_store_dwordx4 v[20:23], v12, s[36:39], s44 offen offset:256 sc1
    buffer_store_dwordx4 v[24:27], v12, s[36:39], s45 offen sc1
    buffer_store_dwordx4 v[28:31], v12, s[36:39], s45 offen offset:256 sc1
    s_mov_b64 exec, -1
    ''')
    TS(6)
    a('s_cmp_ge_u32 s2, 64')
    a('s_cbranch_scc1 L_h_end')
    a(f'''
    v_lshrrev_b32 v1, 3, v0        ; pg
    v_and_b32 v2, 7, v0            ; pc
    v_lshlrev_b32 v1, 13, v1
    v_lshl_add_u32 v1, v2, 4, v1
    s_lshl_b32 s24, s2, 7
    s_lshl_b32 s25, s23, 18        ; 32hw*8192
    s_add_u32 s24, s24, s25
    s_add_u32 s40, s24, {WS_OP:#x}
    s_add_u32 s41, s40, {8*8192}
    s_add_u32 s42, s40, {16*8192}
    s_add_u32 s43, s40, {24*8192}
    v_lshlrev_b32 v5, 4, v2
    v_add_u32 v5, {LDS_C+2048}, v5
    s_lshl_b32 s25, s23, 7
    v_add_u32 v6, s25, v5
    s_lshr_b32 s24, s2, 2
    s_lshl_b32 s24, s24, 8         ; b*2048 + region*256
    s_and_b32 s25, s2, 1
    s_lshl_b32 s25, s25, 7
    s_add_u32 s24, s24, s25
    s_and_b32 s25, s2, 2
    s_lshl_b32 s25, s25, 2
    s_add_u32 s24, s24, s25
    v_lshlrev_b32 v7, 4, v2
    ''')
    def issue3(base):
        for u in range(4):
            a(f'buffer_load_dwordx4 v[{base+4*u}:{base+3+4*u}], v1, s[36:39], s{40+u} offen sc1')
    chk3 = pingpong(a, 's3', issue3, 16, 4, 192, 208, 48, opt)
    pingpong_loop(a, 's3', issue3, 16, 4, 192, 208, chk3, opt)
    for e in range(4):
        a(f'v_add_f32 v{32+e}, v{192+e}, v{196+e}')
        a(f'v_add_f32 v{40+e}, v{200+e}, v{204+e}')
    for e in range(4):
        a(f'v_add_f32 v{32+e}, v{32+e}, v{40+e}')
    a('s_nop 1')
    for e in range(4):
        a(f'v_add_f32_dpp v{32+e}, v{32+e}, v{32+e} row_ror:8 row_mask:0xf bank_mask:0xf')
    for sw in ('v_permlane16_swap_b32', 'v_permlane32_swap_b32'):
        for e in range(4):
            a(f'v_mov_b32 v{36+e}, v{32+e}')
        a('s_nop 0')
        for e in range(4):
            a(f'{sw} v{32+e}, v{36+e}')
        a('s_nop 0')
        for e in range(4):
            a(f'v_add_f32 v{32+e}, v{32+e}, v{36+e}')
    a('''
    s_mov_b64 exec, 0xff
    ds_write_b128 v6, v[32:35]
    s_waitcnt lgkmcnt(0)
    s_barrier                      ; B4
    s_cmp_lg_u32 s23, 0
    s_cbranch_scc1 L_h_end2
    ''')
    for w in range(4):
        a(f'ds_read_b128 v[{32+4*w}:{35+4*w}], v5 offset:{128*w}')
    a('s_waitcnt lgkmcnt(0)')
    for e in range(4):
        a(f'v_add_f32 v{32+e}, v{32+e}, v{36+e}')
        a(f'v_add_f32 v{40+e}, v{40+e}, v{44+e}')
    for e in range(4):
        a(f'v_add_f32 v{32+e}, v{32+e}, v{40+e}')
    a('''
    v_cvt_pk_bf16_f32 v32, v32, v33
    v_cvt_pk_bf16_f32 v33, v34, v35
    buffer_store_dwordx2 v[32:33], v7, s[32:35], s24 offen
    ''')
    a.label('L_h_end2')
    a('s_mov_b64 exec, -1')
    a.label('L_h_end')
    TS(7)
    TS_flush(8)
    a.label('L_done')
    a('s_endpgm')
    a.raw('.section .rodata,"a"')
    a.raw('.p2align 6')
    a.raw(f'.amdhsa_kernel {NAME}')
    a.raw('  .amdhsa_next_free_vgpr 256')
    a.raw('  .amdhsa_next_free_sgpr 96')
    a.raw('  .amdhsa_accum_offset 256')
    a.raw('  .amdhsa_group_segment_fixed_size 0')
    a.raw('  .amdhsa_kernarg_size 64')
    a.raw('  .amdhsa_user_sgpr_count 2')
    a.raw('  .amdhsa_user_sgpr_kernarg_segment_ptr 1')
    a.raw('  .amdhsa_system_sgpr_workgroup_id_x 1')
    a.raw('.end_amdhsa_kernel')
    return a.text().replace('LOOKAHEAD', str(opt.la)).replace('NS_TILES', str(2*opt.nsb))

if __name__ == '__main__':
    p = argparse.ArgumentParser()
    p.add_argument('out')
    p.add_argument('--ldflag', default='nt')
    p.add_argument('--depth', type=int, default=6)
    p.add_argument('--ts', action='store_true')
    p.add_argument('--wo_early', type=int, default=0)
    p.add_argument('--b2b', type=int, default=1)
    p.add_argument('--nsb', type=int, default=6)
    p.add_argument('--la', type=int, default=1)
    p.add_argument('--pp_lsleep', type=int, default=0)
    p.add_argument('--touch', type=int, default=0)
    p.add_argument('--pp_sleep', type=int, default=5)
    p.add_argument('--n1', type=int, default=24)
    p.add_argument('--depth1', type=int, default=6)
    p.add_argument('--switch', type=int, default=32)
    p.add_argument('--n0', type=int, default=4)
    p.add_argument('--b0w', type=int, default=0)
    p.add_argument('--noq', action='store_true')
    p.add_argument('--sleep1', type=int, default=8)
    p.add_argument('--sleep2', type=int, default=4)
    opt = p.parse_args()
    open(opt.out, 'w').write(gen(opt))
```

```python
import sys, struct, argparse

HEADER = open('standalone__gqa_block_cached__decode.s.ref').read().split('; Override launch')[0]
NAME = 'standalone__gqa_block_cached__decode_kernel'

class A:
    def __init__(self):
        self.l = []
    def __call__(self, s):
        for line in s.strip('\n').split('\n'):
            if line.strip():
                self.l.append('    ' + line.strip())
    def label(self, s):
        self.l.append(s + ':')
    def raw(self, s):
        self.l.append(s)
    def extend(self, lines):
        self.l.extend(lines)
    def text(self):
        return '\n'.join(self.l) + '\n'

WS_QP = 0
WS_PO = 0x20000
WS_ML = WS_PO + 0x100000
WS_OP = WS_ML + 0x4000
WS_TS = WS_OP + 0x100000
WS_END = WS_TS + 0x20000

SCALE_LOG2E = 0.08838834764831845 * 1.4426950408889634
def fbits(f):
    return '0x%08x' % struct.unpack('<I', struct.pack('<f', f))[0]

def srd(a, d, base, nbytes):
    a(f's_mov_b32 s{d}, s{base}')
    a(f's_and_b32 s{d+1}, s{base+1}, 0xffff')
    a(f's_mov_b32 s{d+2}, {nbytes:#x}')
    a(f's_mov_b32 s{d+3}, 0x20000')

SEL_LO, SEL_HI = 90, 91
def perm_pair(a, dst, blk, q, hi):
    sel = SEL_HI if hi else SEL_LO
    for u in range(4):
        a(f'v_perm_b32 v{dst+u}, v{blk+4*(2*u+1)+q}, v{blk+4*(2*u)+q}, s{sel}')

def xlane(a, op, v, t, which):
    sw = 'v_permlane16_swap_b32' if which == 16 else 'v_permlane32_swap_b32'
    a(f'v_mov_b32 v{t}, v{v}\ns_nop 1\n{sw} v{v}, v{t}\ns_nop 1\n{op} v{v}, v{v}, v{t}')

def pingpong(a, tag, issue, nregs, nloads, A0, B0, T0, opt):
    def check(base, dst, cmp):
        regs = list(range(base, base + nregs))
        a(f'v_max3_u32 v{T0}, v{regs[0]}, v{regs[1]}, v{regs[2]}')
        a(f'v_max3_u32 v{T0+1}, v{regs[3]}, v{regs[4]}, v{regs[5]}')
        k = 6
        t = 0
        while k + 1 < nregs:
            a(f'v_max3_u32 v{T0+t}, v{T0+t}, v{regs[k]}, v{regs[k+1]}')
            k += 2
            t ^= 1
        assert k == nregs
        a(f'v_max_u32 v{T0}, v{T0}, v{T0+1}')
        a(f'{cmp} {dst}, -1, v{T0}')
    for r in range(nregs):
        a(f'v_mov_b32 v{B0+r}, -1')
    a('s_mov_b64 s[50:51], -1')
    a(f's_mov_b32 s60, {SPIN}')
    return check

def pingpong_loop(a, tag, issue, nregs, nloads, A0, B0, check, opt):
    issue(A0)
    if opt.pp_sleep:
        a(f's_sleep {opt.pp_sleep}')
    a.label(f'L_{tag}_loop')
    issue(B0)
    a('s_mov_b64 exec, -1')
    a(f's_waitcnt vmcnt({nloads})')
    check(A0, 's[50:51]', 'v_cmp_eq_u32')
    a('s_mov_b64 exec, s[50:51]')
    a(f's_cbranch_execz L_{tag}_ok')
    if opt.pp_lsleep:
        a(f's_sleep {opt.pp_lsleep}')
    issue(A0)
    a('s_mov_b64 exec, -1')
    a(f's_waitcnt vmcnt({nloads})')
    check(B0, 'vcc', 'v_cmp_ne_u32')
    a('s_and_b64 exec, vcc, s[50:51]')
    for r in range(nregs):
        a(f'v_mov_b32 v{A0+r}, v{B0+r}')
    a('s_andn2_b64 exec, s[50:51], vcc')
    a(f's_cbranch_execz L_{tag}_ok')
    if opt.pp_lsleep:
        a(f's_sleep {opt.pp_lsleep}')
    a('s_sub_u32 s60, s60, 1')
    a('s_cmp_lg_u32 s60, 0')
    a(f's_cbranch_scc1 L_{tag}_loop')
    a.label(f'L_{tag}_ok')
    a('s_mov_b64 exec, -1')

LDS_RING = 32768
LDS_Q = 4*LDS_RING
LDS_ML = LDS_Q + 2048
LDS_PW = LDS_Q + 2432
LDS_MB = LDS_Q + 2560
LDS_C = LDS_Q + 4096
LDS_TOTAL = LDS_Q + 8192
KD, KR, QF, SB, OB, KF, VS = 8, 12, 16, 32, 64, 96, 128
SPIN = 400000

def gen(opt):
    a = A()
    ld = opt.ldflag
    def TS(idx, tgt=None):
        if opt.ts:
            (tgt or a)(f's_memrealtime s[62:63]\ns_waitcnt lgkmcnt(0)\ns_mov_b32 s{64+idx}, s62')
    def TS_flush(nidx):
        if opt.ts:
            a(f'''
            s_lshl_b32 s62, s2, 9
            s_lshl_b32 s63, s27, 6
            s_add_u32 s62, s62, s63
            s_add_u32 s62, s62, {WS_TS:#x}
            v_mov_b32 v1, 0
            s_mov_b64 exec, 1
            ''')
            for i in range(nidx):
                a(f'v_mov_b32 v2, s{64+i}\nbuffer_store_dword v2, v1, s[36:39], s62 offen offset:{4*i}\ns_nop 1')
            a('s_mov_b64 exec, -1')

    a.raw(HEADER.rstrip('\n'))
    a.raw(f'; @launch grid=(256,1,1) block=(512,1,1) lds={LDS_TOTAL}')
    a.raw('.amdgcn_target "amdgcn-amd-amdhsa--gfx950"')
    a.raw('.text')
    a.raw(f'.globl {NAME}')
    a.raw('.p2align 8')
    a.raw(f'.type {NAME},@function')
    a.label(NAME)
    a('s_cmp_ge_u32 s2, 256')
    a('s_cbranch_scc1 L_done')
    a('s_load_dwordx16 s[4:19], s[0:1], 0')
    TS(0)
    a(f'''
    s_mov_b32 s{SEL_LO}, 0x05040100
    s_mov_b32 s{SEL_HI}, 0x07060302
    v_lshrrev_b32 v1, 6, v0
    s_lshr_b32 s20, s2, 6          ; hkv
    s_bfe_u32 s21, s2, 0x10005     ; b = (wg>>5)&1
    v_readfirstlane_b32 s23, v1
    s_and_b32 s22, s2, 31          ; split
    v_and_b32 v0, 63, v0           ; lane
    v_and_b32 v3, 15, v0           ; l&15
    v_lshrrev_b32 v4, 4, v0        ; g
    s_mov_b32 s27, s23
    s_cmp_ge_u32 s23, 4
    s_cbranch_scc1 L_helper
    ''')
    a('''
    v_lshlrev_b32 v1, 4, v3
    v_lshl_add_u32 v1, v4, 10, v1  ; vVoff = g*1024 + (l&15)*16
    s_lshl_b32 s51, s21, 2
    s_add_u32 s51, s51, s20
    s_lshl_b32 s52, s51, 19
    s_mov_b32 s53, s52
    s_add_u32 s55, s51, NS_TILES
    s_lshl_b32 s51, s51, 23
    s_lshl_b32 s25, s23, 12
    s_add_u32 s54, s51, s25
    s_mov_b32 s58, LOOKAHEAD
    s_lshl_b32 s25, s22, 2
    s_add_u32 s25, s25, s23
    s_lshl_b32 s25, s25, 12
    s_add_u32 s51, s51, s25
    s_add_u32 s24, s51, s52
    s_mov_b32 s25, s24
    s_lshl_b32 s50, s23, 15
    v_lshlrev_b32 v5, 8, v4        ; g*256
    v_lshlrev_b32 v6, 8, v3        ; r*256
    v_add_u32 v6, s50, v6
    ''')
    for i in range(4):
        a(f'v_add_u32 v7, {4*i}, v4')
        a('v_xor_b32 v7, v7, v3')
        a(f'v_lshl_add_u32 v{KD+i}, v7, 4, v5')
        a(f'v_lshl_add_u32 v{KR+i}, v7, 4, v6')
    a('s_waitcnt lgkmcnt(0)')
    srd(a, 28, 6, 0x4000000)
    srd(a, 32, 8, 0x4000000)
    srd(a, 36, 18, WS_END)

    order = [('K', 0), ('K', 1), ('K', 2), ('K', 3), ('V', 0), ('V', 1), ('V', 2), ('V', 3),
             ('K', 4), ('K', 5), ('V', 4), ('V', 5)]
    NSB = opt.nsb
    if NSB == 7:
        order = order[:8] + [('K', 4), ('K', 5), ('K', 6), ('V', 4), ('V', 5), ('V', 6)]
    NS = 2*NSB
    NT = (16 - NS)*32
    last_idx = {}
    for n, key in enumerate(order):
        last_idx[key] = 8*n + 7
    issued = [0]
    def load_pair(blk, pi):
        kind, i = blk
        t = A()
        D = opt.depth1 if issued[0] < opt.switch else opt.depth
        if issued[0] == opt.n0:
            t('s_barrier')
        if issued[0] == opt.n1:
            t(f'v_mov_b32 v2, {LDS_C+4}')
            t('v_mov_b32 v5, 1')
            t('ds_write_b32 v2, v5')
        if issued[0] >= D - 1:
            t(f's_waitcnt vmcnt({D-2})')
        u, jj = pi // 2, (pi % 2)*2
        if kind == 'K':
            if jj == 0:
                t(f's_add_u32 m0, s50, {(i % 4)*8192 + u*4096}')
                t('s_nop 0')
            for j in (jj, jj+1):
                t(f'buffer_load_dwordx4 v{KD+j}, s[28:31], s24 offen offset:{1024*j} {ld} lds')
            if jj == 2:
                t('s_add_u32 s52, s52, 0x80000')
                t('s_and_b32 s52, s52, 0x7fffff')
                t('s_add_u32 s24, s51, s52')
        else:
            base = VS + 32*(i % 4)
            for j in (jj, jj+1):
                r = base + 16*u + 4*j
                t(f'buffer_load_dwordx4 v[{r}:{r+3}], v1, s[32:35], s25 offen offset:{256*j} {ld}')
            if jj == 2:
                t('s_add_u32 s53, s53, 0x80000')
                t('s_and_b32 s53, s53, 0x7fffff')
                t('s_add_u32 s25, s51, s53')
        issued[0] += 2
        return t.l
    def need(key):
        return ('NEED', key)

    def atom_qk(i):
        t = A()
        t.l.append(need(('K', i)))
        for u in range(2):
            for j in range(4):
                t(f'ds_read_b128 v[{KF+16*u+4*j}:{KF+16*u+4*j+3}], v{KR+j} offset:{(i % 4)*8192 + u*4096}')
        for u in range(2):
            t(f's_waitcnt lgkmcnt({4*(1-u)})')
            d = SB + 8*(i % 4) + 4*u
            for j in range(4):
                c = '0' if j == 0 else f'v[{d}:{d+3}]'
                r = KF + 16*u + 4*j
                t(f'v_mfma_f32_16x16x32_bf16 v[{d}:{d+3}], v[{r}:{r+3}], v[{QF+4*j}:{QF+4*j+3}], {c}')
        return t.l
    def atom_softmax(chunk, n=32):
        t = A()
        t('s_nop 7')
        t(f'v_max3_f32 v6, v{SB}, v{SB+1}, v{SB+2}')
        t(f'v_max3_f32 v7, v{SB+3}, v{SB+4}, v{SB+5}')
        k = 6
        while k < n:
            t(f'v_max3_f32 v6, v6, v{SB+k}, v{SB+k+1}')
            if k + 2 < n:
                t(f'v_max3_f32 v7, v7, v{SB+k+2}, v{SB+k+3}')
            k += 4
        t('v_max_f32 v6, v6, v7')
        t('s_nop 0')
        xlane(t, 'v_max_f32', 6, 7, 32)
        t('s_nop 0')
        xlane(t, 'v_max_f32', 6, 7, 16)
        if chunk == 0:
            t('v_mul_f32 v2, s42, v6')
            t('v_mov_b32 v5, 0')
        else:
            t('v_mul_f32 v6, s42, v6')
            t('v_max_f32 v6, v6, v2')
            t('v_sub_f32 v7, v2, v6')
            t('v_exp_f32 v7, v7              ; alpha')
            t('v_mov_b32 v2, v6')
            t('v_mul_f32 v5, v5, v7')
            for k in range(32):
                t(f'v_mul_f32 v{OB+k}, v{OB+k}, v7')
        t('v_mov_b32 v6, 0')
        for k in range(n):
            t(f'v_fma_f32 v{SB+k}, v{SB+k}, s42, -v2')
        for k in range(n):
            t(f'v_exp_f32 v{SB+k}, v{SB+k}')
        t('s_nop 0')
        for k in range(0, n, 2):
            t(f'v_add_f32 v5, v5, v{SB+k}')
            t(f'v_add_f32 v6, v6, v{SB+k+1}')
            t(f'v_cvt_pk_bf16_f32 v{SB+k//2}, v{SB+k}, v{SB+k+1}')
        t('v_add_f32 v5, v5, v6')
        return t.l
    def atom_pv(i):
        t = A()
        t.l.append(need(('V', i)))
        base = VS + 32*(i % 4)
        p = SB + 4*(i % 4)
        for q in range(4):
            for hi in range(2):
                e = 2*q + hi
                tmp = KF + 4*(e % 4)
                perm_pair(t, tmp, base, q, hi)
                t('s_nop 1')
                d = OB + 4*e
                c = '0' if i == 0 else f'v[{d}:{d+3}]'
                t(f'v_mfma_f32_16x16x32_bf16 v[{d}:{d+3}], v[{tmp}:{tmp+3}], v[{p}:{p+3}], {c}')
        return t.l
    def emit(lines):
        for ln in lines:
            if isinstance(ln, tuple):
                n = issued[0] - 1 - last_idx[ln[1]]
                assert n >= 0, ln
                a(f's_waitcnt vmcnt({min(n, 63)})')
            else:
                a.raw(ln)
    def segment(blk, atoms):
        lines = [x for at in atoms for x in at]
        n = len(lines)
        cuts = [n*k//4 for k in range(5)]
        for pi in range(4):
            a.extend(load_pair(blk, pi))
            emit(lines[cuts[pi]:cuts[pi+1]])

    for blk in order[:8]:
        segment(blk, [])
    for r in range(16):
        a(f'v_mov_b32 v{QF+r}, 0')
    a(f'''
    v_lshlrev_b32 v7, 8, v3
    v_lshl_add_u32 v7, v4, 4, v7   ; h*256 + 16g
    v_add_u32 v7, {LDS_Q}, v7
    s_mov_b32 s40, 0x00ff00ff
    s_mov_b32 s41, 0x00ff00ff
    s_mov_b32 s42, {fbits(SCALE_LOG2E)}
    ''')
    TS(1)
    a('''
    s_barrier
    s_mov_b64 exec, s[40:41]
    ''')
    for j in range(4):
        a(f'ds_read_b128 v[{QF+4*j}:{QF+4*j+3}], v7 offset:{64*j}')
    a('s_mov_b64 exec, -1')
    TS(2)
    a('s_waitcnt lgkmcnt(0)')
    emit(atom_qk(0))
    segment(('K', 4), [atom_qk(1), atom_qk(2), atom_qk(3)])
    segment(('K', 5), [atom_softmax(0), atom_pv(0)])
    if NSB == 6:
        segment(('V', 4), [atom_pv(1), atom_pv(2), atom_pv(3)])
    else:
        segment(('K', 6), [atom_pv(1), atom_pv(2)])
        segment(('V', 4), [atom_pv(3), atom_qk(4)])
    TS(3)
    def request0():
        a(f'''
        v_mov_b32 v6, {LDS_PW}
        v_mov_b32 v7, {opt.la}
        s_mov_b32 s59, {SPIN}
        s_cmp_lg_u32 s23, 0
        s_cbranch_scc1 L_noreq0
        ds_write_b32 v6, v7
        ''')
        a.label('L_noreq0')
    if NSB == 6:
        request0()
        segment(('V', 5), [atom_qk(4), atom_qk(5)])
    else:
        segment(('V', 5), [atom_qk(5), atom_qk(6)])
        request0()
        segment(('V', 6), [atom_softmax(1, 24)])
    a(f'v_mov_b32 v120, {LDS_MB}')
    a(f'v_mov_b32 v121, {LDS_PW}')
    DSL = 8192*(NSB % 4)
    DV = VS + 32*(NSB % 4)
    DS_, DP = SB + 24, SB + 28
    def dyn_issue(slot, tag):
        a.label(f'L_mb{tag}')
        a(f'''
        ds_read_b32 v122, v120
        s_waitcnt lgkmcnt(0)
        v_readfirstlane_b32 s56, v122
        s_cmp_lg_u32 s56, -1
        s_cbranch_scc1 L_mb{tag}_ok
        s_sleep 1
        s_sub_u32 s59, s59, 1
        s_cmp_lg_u32 s59, 0
        s_cbranch_scc1 L_mb{tag}
        ''')
        a.label(f'L_mb{tag}_ok')
        a(f'''
        v_add_u32 v120, 4, v120
        s_cmp_lt_u32 s56, {NT}
        s_cselect_b32 s57, 1, 0
        s_cselect_b32 s24, s23, 1
        s_cmp_lg_u32 s24, 0
        s_cbranch_scc1 L_mb{tag}_nr
        s_add_u32 s58, s58, 1
        v_mov_b32 v122, s58
        ds_write_b32 v121, v122
        ''')
        a.label(f'L_mb{tag}_nr')
        a(f'''
        s_lshr_b32 s24, s56, 5
        s_add_u32 s24, s24, s55
        s_and_b32 s24, s24, 15
        s_lshl_b32 s24, s24, 19
        s_add_u32 s24, s24, s54
        s_and_b32 s25, s56, 31
        s_lshl_b32 s25, s25, 14
        s_add_u32 s24, s24, s25
        s_add_u32 m0, s50, {DSL + 4096*slot}
        s_cmp_lg_u32 s57, 0
        s_cselect_b32 s24, s24, 0x7ff00000
        ''')
        for j in range(4):
            a(f'buffer_load_dwordx4 v{KD+j}, s[28:31], s24 offen offset:{1024*j} {ld} lds')
        for j in range(4):
            r = DV + 16*slot + 4*j
            a(f'buffer_load_dwordx4 v[{r}:{r+3}], v1, s[32:35], s24 offen offset:{256*j} {ld}')
    def dyn_compute(slot, tag):
        a('s_waitcnt vmcnt(12)')
        for j in range(4):
            a(f'ds_read_b128 v[{KF+4*j}:{KF+4*j+3}], v{KR+j} offset:{DSL + 4096*slot}')
        for j in range(4):
            a(f's_waitcnt lgkmcnt({3-j})')
            c = '0' if j == 0 else f'v[{DS_}:{DS_+3}]'
            a(f'v_mfma_f32_16x16x32_bf16 v[{DS_}:{DS_+3}], v[{KF+4*j}:{KF+4*j+3}], v[{QF+4*j}:{QF+4*j+3}], {c}')
        a('s_nop 7')
        a(f'v_max3_f32 v6, v{DS_}, v{DS_+1}, v{DS_+2}')
        a(f'v_max_f32 v6, v6, v{DS_+3}')
        a('s_nop 0')
        xlane(a, 'v_max_f32', 6, 7, 32)
        a('s_nop 0')
        xlane(a, 'v_max_f32', 6, 7, 16)
        a(f'''
        v_mul_f32 v6, s42, v6
        v_cmp_gt_f32 vcc, v6, v2
        s_cbranch_vccz L_nors{tag}
        v_max_f32 v6, v6, v2
        v_sub_f32 v7, v2, v6
        v_exp_f32 v7, v7
        v_mov_b32 v2, v6
        v_mul_f32 v5, v5, v7
        ''')
        for k in range(32):
            a(f'v_mul_f32 v{OB+k}, v{OB+k}, v7')
        a.label(f'L_nors{tag}')
        for k in range(4):
            a(f'v_fma_f32 v{DS_+k}, v{DS_+k}, s42, -v2')
        for k in range(4):
            a(f'v_exp_f32 v{DS_+k}, v{DS_+k}')
        a(f'''
        s_waitcnt vmcnt(8)
        v_add_f32 v6, v{DS_}, v{DS_+1}
        v_add_f32 v7, v{DS_+2}, v{DS_+3}
        v_cvt_pk_bf16_f32 v{DP}, v{DS_}, v{DS_+1}
        v_cvt_pk_bf16_f32 v{DP+1}, v{DS_+2}, v{DS_+3}
        v_add_f32 v5, v5, v6
        v_add_f32 v5, v5, v7
        ''')
        base = DV + 16*slot
        for q in range(4):
            for hi in range(2):
                e = 2*q + hi
                tmp = KF + 16 + 2*(e % 4)
                sel = SEL_HI if hi else SEL_LO
                a(f'v_perm_b32 v{tmp}, v{base+4+q}, v{base+q}, s{sel}')
                a(f'v_perm_b32 v{tmp+1}, v{base+12+q}, v{base+8+q}, s{sel}')
                a('s_nop 1')
                d = OB + 4*e
                a(f'v_mfma_f32_16x16x16_bf16 v[{d}:{d+3}], v[{tmp}:{tmp+1}], v[{DP}:{DP+1}], v[{d}:{d+3}]')
    dyn_issue(0, 'a')
    issued[0] += 8
    if NSB == 6:
        emit(atom_softmax(1, 16))
    for i in range(4, NSB):
        emit(atom_pv(i))
    TS(4)
    a('s_cmp_eq_u32 s57, 0')
    a('s_cbranch_scc1 L_dyn_done')
    a.label('L_dyn_loop')
    dyn_issue(1, 'b')
    dyn_compute(0, 'b')
    a('s_cmp_eq_u32 s57, 0')
    a('s_cbranch_scc1 L_dyn_done')
    dyn_issue(0, 'c')
    dyn_compute(1, 'c')
    a('s_cmp_lg_u32 s57, 0')
    a('s_cbranch_scc1 L_dyn_loop')
    a.label('L_dyn_done')
    TS(5)
    t = A()
    t('s_nop 0')
    xlane(t, 'v_add_f32', 5, 6, 32)
    t('s_nop 0')
    xlane(t, 'v_add_f32', 5, 6, 16)
    t(f'''
    v_mov_b32 v6, v2
    v_mov_b32 v7, v5
    s_lshl_b32 s43, s23, 6
    v_lshlrev_b32 v2, 3, v3
    v_add_u32 v2, s43, v2          ; wave*64 + h*8
    v_add_u32 v2, {LDS_ML}, v2
    s_mov_b64 exec, 0xff
    ds_write_b64 v2, v[6:7]
    s_mov_b64 exec, -1
    v_lshlrev_b32 v5, 9, v3
    v_lshl_add_u32 v5, v4, 7, v5   ; h*512 + 128g
    v_add_u32 v5, s50, v5
    s_lshl_b32 s43, s23, 1
    v_lshrrev_b32 v7, 5, v0
    v_add_u32 v7, s43, v7
    v_and_b32 v6, 31, v0           ; quad
    v_lshlrev_b32 v8, 9, v7
    v_lshl_add_u32 v8, v6, 4, v8   ; h*512 + quad*16
    v_lshlrev_b32 v7, 3, v7        ; h*8
    v_add_u32 v7, {LDS_ML}, v7
    s_lshl_b32 s43, s2, 12
    s_add_u32 s43, s43, {WS_PO:#x}
    ''')
    emit(t.l)
    a('s_mov_b64 exec, s[40:41]')
    for i in range(8):
        a(f'ds_write_b128 v5, v[{OB+4*i}:{OB+4*i+3}] offset:{16*i}')
    a('s_mov_b64 exec, -1')
    a('s_waitcnt lgkmcnt(0)')
    a('s_barrier')
    for w in range(4):
        a(f'ds_read_b64 v[{40+2*w}:{41+2*w}], v7 offset:{64*w}')
    a(f'v_add_u32 v10, {2*LDS_RING}, v8')
    for w in range(4):
        a(f'ds_read_b128 v[{16+4*w}:{19+4*w}], v{8 if w < 2 else 10} offset:{LDS_RING*(w % 2)}')
    a(f'''
    s_waitcnt lgkmcnt(4)
    v_max_f32 v32, v40, v42
    v_max3_f32 v32, v32, v44, v46   ; M
    v_sub_f32 v40, v40, v32
    v_sub_f32 v42, v42, v32
    v_sub_f32 v44, v44, v32
    v_sub_f32 v46, v46, v32
    v_exp_f32 v40, v40
    v_exp_f32 v42, v42
    v_exp_f32 v44, v44
    v_exp_f32 v46, v46
    s_waitcnt lgkmcnt(0)
    ''')
    for e in range(4):
        a(f'v_mul_f32 v{36+e}, v40, v{16+e}')
    for e in range(4):
        a(f'v_fmac_f32 v{36+e}, v42, v{20+e}')
    for e in range(4):
        a(f'v_fmac_f32 v{36+e}, v44, v{24+e}')
    for e in range(4):
        a(f'v_fmac_f32 v{36+e}, v46, v{28+e}')
    for e in range(4):
        a(f'v_min_u32 v{36+e}, -2, v{36+e}')
    a('''
    buffer_store_dwordx4 v[36:39], v8, s[36:39], s43 offen sc1
    s_barrier
    ''')
    TS(6)
    TS(7)
    TS_flush(8)
    a('s_endpgm')

    a.label('L_helper')
    a('''
    s_setprio 3
    s_sub_u32 s23, s23, 4          ; hw
    s_and_b32 s46, s2, 1           ; ch
    s_bfe_u32 s47, s2, 0x50001
    s_lshl_b32 s48, s20, 5
    s_add_u32 s48, s48, s47
    s_waitcnt lgkmcnt(0)
    ''')
    srd(a, 36, 18, WS_END)
    a('''
    s_and_b32 s21, s2, 15          ; cblk
    s_bfe_u32 s22, s2, 0x20004
    v_lshlrev_b32 v1, 4, v0
    s_lshl_b32 s52, s22, 15        ; kq*32768
    s_lshl_b32 s25, s20, 12        ; 1024hkv*4
    s_add_u32 s52, s52, s25
    s_lshl_b32 s25, s21, 8         ; 64cblk*4
    s_add_u32 s52, s52, s25
    s_add_u32 s53, s52, 16384
    s_cmp_eq_u32 s23, 0
    s_cbranch_scc1 L_h0
    s_cmp_eq_u32 s23, 1
    s_cbranch_scc1 L_h1
    ''')
    if opt.touch:
        a('''
        s_cmp_lg_u32 s23, 2
        s_cbranch_scc1 L_h23
        s_bfe_u32 s24, s2, 0x10005     ; b
        s_lshl_b32 s24, s24, 2
        s_add_u32 s24, s24, s20
        s_lshl_b32 s24, s24, 23
        s_and_b32 s25, s2, 31
        s_lshl_b32 s25, s25, 18
        s_add_u32 s24, s24, s25
        v_mov_b32 v8, s24
        s_lshl_b32 s25, s48, 16
        v_mov_b32 v9, s25
        v_mov_b32 v10, 0
        s_mov_b64 exec, 1
        global_load_dword v11, v8, s[8:9]
        global_load_dword v12, v9, s[12:13]
        global_load_dword v13, v10, s[14:15]
        s_mov_b64 exec, -1
        ''')
        a.label('L_h23')
    a('''
    s_barrier                      ; B0
    s_branch L_h_notq
    ''')
    a.label('L_h1')
    a(f'''
    v_mov_b32 v6, 0
    v_mov_b32 v7, {LDS_C}
    ds_write_b32 v7, v6            ; flag = 0
    ds_write_b32 v7, v6 offset:4
    v_mov_b32 v9, {LDS_PW}
    ds_write_b32 v9, v6
    v_mov_b32 v8, -1
    v_lshlrev_b32 v9, 2, v0
    v_add_u32 v9, {LDS_MB}, v9
    ds_write_b32 v9, v8
    ds_write_b32 v9, v8 offset:256
    ds_write_b32 v9, v8 offset:512
    ds_write_b32 v9, v8 offset:768
    v_mov_b32 v9, -1
    v_mov_b32 v10, -1
    v_mov_b32 v11, -1
    s_lshl_b32 s43, s2, 12
    s_add_u32 s43, s43, {WS_PO:#x}
    s_lshl_b32 s44, s2, 6
    s_add_u32 s44, s44, {WS_ML:#x}
    s_lshl_b32 s24, s48, 13        ; p*8192
    s_lshl_b32 s25, s46, 11        ; ch*2048
    s_add_u32 s24, s24, s25
    s_add_u32 s24, s24, {WS_OP:#x}
    s_add_u32 s25, s24, 4096
    s_mov_b64 exec, 0xffff
    buffer_store_dwordx4 v[8:11], v1, s[36:39], s52 offen sc1
    buffer_store_dwordx4 v[8:11], v1, s[36:39], s53 offen sc1
    s_mov_b64 exec, 0xf
    buffer_store_dwordx4 v[8:11], v1, s[36:39], s44 offen sc1
    s_mov_b64 exec, -1
    ''')
    for i in range(4):
        a(f'buffer_store_dwordx4 v[8:11], v1, s[36:39], s43 offen offset:{1024*i} sc1')
    for i in range(4):
        a(f'buffer_store_dwordx4 v[8:11], v1, s[36:39], s{24 + i//2} offen offset:{1024*(i & 1)} sc1')
    a(f'''
    s_lshl_b32 s26, s20, 6
    v_mov_b32 v2, s26
    v_mov_b32 v5, 1
    v_mov_b32 v6, 2
    v_and_b32 v12, 3, v0
    v_lshlrev_b32 v12, 6, v12
    s_mov_b32 s60, {SPIN}
    s_waitcnt lgkmcnt(0)
    s_barrier                      ; B0
    s_waitcnt vmcnt(0)
    s_mov_b64 exec, 1
    global_atomic_add v2, v5, s[16:17] sc1
    ds_write_b32 v7, v5            ; flag = 1
    s_mov_b64 exec, 0xf
    ''')
    TS(1)
    a('s_mov_b64 exec, -1')
    a('s_branch L_h_notq')
    a.label('L_h0')
    srd(a, 28, 10, 0x800000)
    srd(a, 32, 4, 0x1000)
    a('''
    v_and_b32 v9, 7, v3            ; c
    v_lshrrev_b32 v10, 3, v3       ; a
    v_lshlrev_b32 v5, 18, v10      ; 32a * 8192
    v_lshlrev_b32 v6, 16, v4       ; 8g * 8192
    v_lshlrev_b32 v7, 4, v9        ; 16c
    v_add3_u32 v5, v5, v6, v7
    v_and_b32 v6, 1, v0            ; b = m&1
    v_lshlrev_b32 v6, 11, v6       ; b*2048
    v_bfe_u32 v7, v0, 1, 1         ; a' = (m>>1)&1
    v_lshlrev_b32 v7, 6, v7        ; 64a'
    v_lshlrev_b32 v8, 4, v4        ; 16g
    v_add3_u32 v6, v6, v7, v8
    s_lshl_b32 s24, s22, 21        ; 256kq*8192
    s_lshl_b32 s25, s20, 11        ; 1024hkv*2
    s_add_u32 s24, s24, s25
    s_lshl_b32 s25, s21, 7         ; 64cblk*2
    s_add_u32 s24, s24, s25
    s_lshl_b32 s26, s22, 9
    ''')
    for w in range(4):
        a(f'buffer_load_dwordx4 v[{16+4*w}:{19+4*w}], v6, s[32:35], s26 offen offset:{128*w}')
    for w in range(4):
        for t_ in range(8):
            r = 64 + 32*w + 4*t_
            a(f'buffer_load_dwordx4 v[{r}:{r+3}], v5, s[28:31], s24 offen {ld}')
            a(f's_add_u32 s24, s24, {8192 if t_ < 7 else 8192*57}')
    for w in range(4):
        if w == 0:
            a('s_barrier                      ; B0')
        a(f's_waitcnt vmcnt({8*(3-w)})')
        if w == 3:
            TS(1)
        for q in range(4):
            for hi in range(2):
                i = 2*q + hi
                tmp = 192 + 4*(i % 4)
                perm_pair(a, tmp, 64 + 32*w, q, hi)
                a('s_nop 1')
                c = '0' if w == 0 else f'v[{32+4*i}:{35+4*i}]'
                a(f'v_mfma_f32_16x16x32_bf16 v[{32+4*i}:{35+4*i}], v[{16+4*w}:{19+4*w}], v[{tmp}:{tmp+3}], {c}')
    a('s_nop 7')
    for b in range(2):
        for i in range(8):
            a(f'v_add_f32_dpp v{64+8*b+i}, v{32+4*i+2+b}, v{32+4*i+b} row_ror:8 row_mask:0xf bank_mask:0xf')
    for i in range(16):
        a(f'v_min_u32 v{64+i}, -2, v{64+i}')
    a(f'''
    v_mov_b32 v7, {LDS_C}
    s_mov_b32 s60, {SPIN}
    ''')
    a.label('L_h0_flag1')
    a('''
    ds_read_b32 v8, v7
    s_waitcnt lgkmcnt(0)
    v_cmp_le_u32 vcc, 1, v8
    s_cbranch_vccnz L_h0_flag1_ok
    s_sleep 1
    s_sub_u32 s60, s60, 1
    s_cmp_lg_u32 s60, 0
    s_cbranch_scc1 L_h0_flag1
    ''')
    a.label('L_h0_flag1_ok')
    a('''
    s_mov_b64 exec, 0xff
    buffer_store_dwordx4 v[64:67], v1, s[36:39], s52 offen sc1
    buffer_store_dwordx4 v[68:71], v1, s[36:39], s52 offen offset:128 sc1
    buffer_store_dwordx4 v[72:75], v1, s[36:39], s53 offen sc1
    buffer_store_dwordx4 v[76:79], v1, s[36:39], s53 offen offset:128 sc1
    s_mov_b64 exec, -1
    ''')
    TS(2)
    a(f'''
    s_mov_b32 s60, {SPIN}
    s_bfe_u32 s21, s2, 0x10005     ; b
    s_lshl_b32 s24, s21, 14        ; b*16384
    s_lshl_b32 s25, s20, 12        ; hkv*1024*4
    s_add_u32 s52, s24, s25
    s_add_u32 s53, s52, 32768
    s_add_u32 s54, s52, 65536
    s_add_u32 s55, s52, 98304
    v_and_b32 v6, 7, v0
    v_lshlrev_b32 v6, 4, v6
    v_lshl_add_u32 v6, v4, 7, v6
    v_bfe_u32 v7, v0, 3, 1
    v_lshl_add_u32 v6, v7, 3, v6
    v_add_u32 v6, {LDS_Q}, v6
    v_mov_b32 v7, {LDS_C}
    ''')
    a.label('L_h0_flag2')
    a('''
    ds_read_b32 v8, v7 offset:4
    s_waitcnt lgkmcnt(0)
    v_cmp_eq_u32 vcc, 1, v8
    s_cbranch_vccnz L_h0_flag2_ok
    s_sleep 2
    s_sub_u32 s60, s60, 1
    s_cmp_lg_u32 s60, 0
    s_cbranch_scc1 L_h0_flag2
    ''')
    a.label('L_h0_flag2_ok')
    a(f'''
    s_mov_b32 s60, {SPIN}
    v_and_b32 v12, 3, v0
    v_lshlrev_b32 v12, 6, v12
    s_mov_b64 exec, 0xf
    ''')
    a.label('L_h0_poll')
    a(f'''
    global_load_dword v8, v12, s[16:17] sc1
    s_waitcnt vmcnt(0)
    v_cmp_gt_u32 vcc, 64, v8
    s_cbranch_vccz L_h0_flag_ok
    s_sleep {opt.sleep1}
    s_sub_u32 s60, s60, 1
    s_cmp_lg_u32 s60, 0
    s_cbranch_scc1 L_h0_poll
    ''')
    a.label('L_h0_flag_ok')
    a('s_mov_b64 exec, -1')
    a(f's_mov_b32 s60, {SPIN}')
    TS(3)
    a.label('L_h1_gather')
    for kq in range(4):
        for u in range(4):
            r = 16 + 16*kq + 4*u
            a(f'buffer_load_dwordx4 v[{r}:{r+3}], v1, s[36:39], s{52+kq} offen offset:{1024*u} sc1')
    a('s_waitcnt vmcnt(0)')
    a('v_max3_u32 v8, v16, v17, v18')
    a('v_max3_u32 v9, v19, v20, v21')
    for k in range(22, 78, 4):
        a(f'v_max3_u32 v8, v8, v{k}, v{k+1}')
        a(f'v_max3_u32 v9, v9, v{k+2}, v{k+3}')
    a(f'''
    v_max3_u32 v8, v8, v78, v79
    v_max_u32 v8, v8, v9
    v_cmp_eq_u32 vcc, -1, v8
    s_cbranch_vccz L_h1_got
    s_sleep {opt.sleep1}
    s_sub_u32 s60, s60, 1
    s_cmp_lg_u32 s60, 0
    s_cbranch_scc1 L_h1_gather
    ''')
    a.label('L_h1_got')
    for e in range(16):
        a(f'v_add_f32 v{16+e}, v{16+e}, v{32+e}')
        a(f'v_add_f32 v{48+e}, v{48+e}, v{64+e}')
    for e in range(16):
        a(f'v_add_f32 v{16+e}, v{16+e}, v{48+e}')
    for e in range(8):
        a(f'v_cvt_pk_bf16_f32 v{16+e}, v{16+2*e}, v{17+2*e}')
    for u in range(4):
        a(f'ds_write_b64 v6, v[{16+2*u}:{17+2*u}] offset:{512*u}')
    a('s_waitcnt lgkmcnt(0)')
    TS(4)
    a.label('L_h_notq')
    a('s_setprio 0')
    a('s_barrier                      ; B1')
    srd(a, 28, 12, 0x800000)
    srd(a, 32, 14, 4096)
    a('''
    v_lshlrev_b32 v1, 4, v3
    v_lshl_add_u32 v1, v4, 12, v1  ; 2g*2048 + 16n'
    s_lshl_b32 s24, s48, 16
    s_lshl_b32 s25, s46, 10        ; 512ch*2
    s_add_u32 s24, s24, s25
    s_lshl_b32 s25, s23, 8         ; 128w*2
    s_add_u32 s24, s24, s25
    ''')
    for t_ in range(8):
        a(f's_add_u32 s25, s24, {(8*(t_&3) + (t_>>2))*2048}')
        a(f'buffer_load_dwordx4 v[{64+4*t_}:{67+4*t_}], v1, s[28:31], s25 offen {ld}')
    a(f'''
    v_bfe_u32 v5, v0, 3, 1         ; b
    v_lshl_add_u32 v5, v5, 5, v4   ; 32b + sg4
    v_and_b32 v7, 7, v0            ; pc
    v_lshlrev_b32 v6, 12, v5       ; *4096
    v_lshl_add_u32 v6, v7, 4, v6   ; + pc*16
    v_lshlrev_b32 v7, 6, v5        ; *64 (ML)
    s_lshl_b32 s24, s20, 18        ; 64hkv*4096
    s_lshl_b32 s25, s47, 7
    s_add_u32 s24, s24, s25
    s_lshl_b32 s25, s23, 15        ; 8hw*4096
    s_add_u32 s24, s24, s25
    s_add_u32 s40, s24, {WS_PO:#x}
    s_add_u32 s41, s40, {4*4096}
    s_lshl_b32 s26, s20, 12        ; 64hkv*64
    s_lshr_b32 s25, s47, 2
    s_lshl_b32 s25, s25, 3         ; hh*8
    s_add_u32 s26, s26, s25
    s_lshl_b32 s25, s23, 9         ; 8hw*64
    s_add_u32 s26, s26, s25
    s_add_u32 s26, s26, {WS_ML:#x}
    v_lshlrev_b32 v8, 4, v3
    s_lshl_b32 s25, s23, 9
    s_add_u32 s25, s25, {LDS_C}
    v_add_u32 v8, s25, v8
    v_bfe_u32 v9, v0, 3, 1
    v_lshlrev_b32 v9, 3, v9
    v_add_u32 v9, s25, v9
    v_and_b32 v10, 1, v0
    v_lshlrev_b32 v11, 3, v10
    v_add_u32 v11, {LDS_C}, v11
    v_lshlrev_b32 v10, 7, v10
    v_lshl_add_u32 v10, v4, 5, v10
    v_add_u32 v10, {LDS_C}, v10
    v_lshlrev_b32 v12, 4, v3
    s_lshl_b32 s44, s48, 13
    s_lshl_b32 s25, s46, 11
    s_add_u32 s44, s44, s25
    s_lshl_b32 s25, s23, 9
    s_add_u32 s44, s44, s25
    s_add_u32 s44, s44, {WS_OP:#x}
    s_add_u32 s45, s44, 4096
    s_mov_b64 s[50:51], -1
    s_mov_b64 s[52:53], -1
    s_mov_b64 s[54:55], -1
    s_mov_b64 s[56:57], -1
    s_mov_b32 s60, {SPIN}
    s_waitcnt vmcnt(0)
    ''')
    for q in range(4):
        for hi in range(2):
            perm_pair(a, 96 + 4*(2*q+hi), 64, q, hi)
    def issue2(base):
        for k in range(2):
            a(f'buffer_load_dwordx4 v[{base+4*k}:{base+3+4*k}], v6, s[36:39], s{40+k} offen sc1')
            a(f'buffer_load_dwordx2 v[{base+8+2*k}:{base+9+2*k}], v7, s[36:39], s26 offen offset:{256*k} sc1')
    chk2 = pingpong(a, 's2', issue2, 12, 4, 160, 176, 28, opt)
    a(f'''
    v_and_b32 v13, 7, v0
    v_lshlrev_b32 v13, 3, v13      ; (l&7)*8
    v_add_u32 v14, {LDS_ML}, v13
    s_lshl_b32 s42, s2, 6
    s_add_u32 s42, s42, {WS_ML:#x}
    ''')
    a(f'''
    s_cmp_lg_u32 s23, 2
    s_cbranch_scc1 L_no_tk
    s_setprio 3
    s_bfe_u32 s24, s2, 0x10005     ; b
    s_lshl_b32 s24, s24, 2         ; (r>>2)*4
    s_lshl_b32 s25, s20, 6         ; (r&3)*64
    s_add_u32 s24, s24, s25
    s_add_u32 s24, s24, 32
    v_mov_b32 v21, s24
    v_mov_b32 v22, 1
    v_mov_b32 v23, {LDS_PW}
    v_mov_b32 v24, {LDS_MB}
    s_mov_b32 s61, 0
    s_mov_b32 s59, {4*SPIN}
    s_mov_b64 exec, 1
    ''')
    a.label('L_tk')
    a(f'''
    ds_read_b32 v20, v23
    s_waitcnt lgkmcnt(0)
    v_readfirstlane_b32 s24, v20
    s_cmp_gt_u32 s24, s61
    s_cbranch_scc1 L_tk_go
    s_sleep 1
    s_sub_u32 s59, s59, 1
    s_cmp_lg_u32 s59, 0
    s_cbranch_scc1 L_tk
    s_branch L_tk_end
    ''')
    a.label('L_tk_go')
    a(f'''
    global_atomic_add v20, v21, v22, s[16:17] sc0 sc1
    s_add_u32 s61, s61, 1
    s_waitcnt vmcnt(0)
    ds_write_b32 v24, v20
    v_add_u32 v24, 4, v24
    v_readfirstlane_b32 s24, v20
    s_cmp_lt_u32 s24, {NT}
    s_cbranch_scc1 L_tk
    ''')
    a.label('L_tk_end')
    a('s_mov_b64 exec, -1')
    a('s_waitcnt lgkmcnt(0)')
    a.label('L_no_tk')
    a('s_barrier                      ; B2')
    a('s_cmp_lg_u32 s23, 3')
    a('s_cbranch_scc1 L_no_ml')
    for w in range(4):
        a(f'ds_read_b64 v[{40+2*w}:{41+2*w}], v14 offset:{64*w}')
    a('''
    s_waitcnt lgkmcnt(0)
    v_max_f32 v32, v40, v42
    v_max3_f32 v32, v32, v44, v46   ; M
    v_sub_f32 v40, v40, v32
    v_sub_f32 v42, v42, v32
    v_sub_f32 v44, v44, v32
    v_sub_f32 v46, v46, v32
    v_exp_f32 v40, v40
    v_exp_f32 v42, v42
    v_exp_f32 v44, v44
    v_exp_f32 v46, v46
    v_min_u32 v32, -2, v32
    v_mul_f32 v33, v40, v41
    v_fmac_f32 v33, v42, v43
    v_fmac_f32 v33, v44, v45
    v_fmac_f32 v33, v46, v47        ; L
    v_min_u32 v33, -2, v33
    s_mov_b64 exec, 0xff
    buffer_store_dwordx2 v[32:33], v13, s[36:39], s42 offen sc1
    s_mov_b64 exec, -1
    ''')
    a.label('L_no_ml')
    a('s_barrier                      ; B2b')
    pingpong_loop(a, 's2', issue2, 12, 4, 160, 176, chk2, opt)
    TS(5)
    a('v_max_f32 v32, v168, v170')
    a('s_nop 0')
    xlane(a, 'v_max_f32', 32, 33, 16)
    a('s_nop 0')
    xlane(a, 'v_max_f32', 32, 33, 32)
    a('''
    v_sub_f32 v24, v168, v32
    v_sub_f32 v26, v170, v32
    v_exp_f32 v24, v24
    v_exp_f32 v26, v26
    s_nop 0
    v_mul_f32 v33, v24, v169
    ''')
    for e in range(4):
        a(f'v_mul_f32 v{36+e}, v24, v{160+e}')
    a('v_fmac_f32 v33, v26, v171')
    for e in range(4):
        a(f'v_fmac_f32 v{36+e}, v26, v{164+e}')
    vals = [33, 36, 37, 38, 39]
    for sw in ('v_permlane16_swap_b32', 'v_permlane32_swap_b32'):
        for i, v in enumerate(vals):
            a(f'v_mov_b32 v{40+i}, v{v}')
        a('s_nop 0')
        for i, v in enumerate(vals):
            a(f'{sw} v{v}, v{40+i}')
        a('s_nop 0')
        for i, v in enumerate(vals):
            a(f'v_add_f32 v{v}, v{v}, v{40+i}')
    a('''
    s_mov_b64 exec, 0xffff
    ds_write_b128 v8, v[36:39]
    s_mov_b64 exec, 0x101
    ds_write_b64 v9, v[32:33] offset:256
    s_mov_b64 exec, -1
    s_waitcnt lgkmcnt(0)
    s_barrier
    ''')
    for w in range(4):
        a(f'ds_read_b64 v[{16+2*w}:{17+2*w}], v11 offset:{512*w+256}')
    for w in range(4):
        a(f'ds_read_b128 v[{24+8*w}:{27+8*w}], v10 offset:{512*w}')
        a(f'ds_read_b128 v[{28+8*w}:{31+8*w}], v10 offset:{512*w+16}')
    a('''
    s_waitcnt lgkmcnt(8)
    v_max_f32 v56, v16, v18
    v_max3_f32 v56, v56, v20, v22
    v_sub_f32 v16, v16, v56
    v_sub_f32 v18, v18, v56
    v_sub_f32 v20, v20, v56
    v_sub_f32 v22, v22, v56
    v_exp_f32 v16, v16
    v_exp_f32 v18, v18
    v_exp_f32 v20, v20
    v_exp_f32 v22, v22
    s_nop 0
    v_mul_f32 v57, v16, v17
    v_fmac_f32 v57, v18, v19
    v_fmac_f32 v57, v20, v21
    v_fmac_f32 v57, v22, v23
    v_rcp_f32 v57, v57
    s_nop 0
    v_mul_f32 v16, v16, v57
    v_mul_f32 v18, v18, v57
    v_mul_f32 v20, v20, v57
    v_mul_f32 v22, v22, v57
    s_waitcnt lgkmcnt(0)
    ''')
    for e in range(8):
        a(f'v_mul_f32 v{24+e}, v16, v{24+e}')
    for w in range(1, 4):
        for e in range(8):
            a(f'v_fmac_f32 v{24+e}, v{16+2*w}, v{24+8*w+e}')
    for e in range(4):
        a(f'v_cvt_pk_bf16_f32 v{60+e}, v{24+2*e}, v{25+2*e}')
    a('s_nop 1')
    for i in range(8):
        a(f'v_mfma_f32_16x16x32_bf16 v[{128+4*i}:{131+4*i}], v[60:63], v[{96+4*i}:{99+4*i}], 0')
    a('s_nop 1')
    for i in range(8):
        for b in range(2):
            a(f'v_min_u32 v{16+8*b+i}, -2, v{128+4*i+b}')
    a('''
    s_mov_b64 exec, 0xffff
    buffer_store_dwordx4 v[16:19], v12, s[36:39], s44 offen sc1
    buffer_store_dwordx4 v[20:23], v12, s[36:39], s44 offen offset:256 sc1
    buffer_store_dwordx4 v[24:27], v12, s[36:39], s45 offen sc1
    buffer_store_dwordx4 v[28:31], v12, s[36:39], s45 offen offset:256 sc1
    s_mov_b64 exec, -1
    ''')
    TS(6)
    a('s_cmp_ge_u32 s2, 64')
    a('s_cbranch_scc1 L_h_end')
    a(f'''
    v_lshrrev_b32 v1, 3, v0        ; pg
    v_and_b32 v2, 7, v0            ; pc
    v_lshlrev_b32 v1, 13, v1
    v_lshl_add_u32 v1, v2, 4, v1
    s_lshl_b32 s24, s2, 7
    s_lshl_b32 s25, s23, 18        ; 32hw*8192
    s_add_u32 s24, s24, s25
    s_add_u32 s40, s24, {WS_OP:#x}
    s_add_u32 s41, s40, {8*8192}
    s_add_u32 s42, s40, {16*8192}
    s_add_u32 s43, s40, {24*8192}
    v_lshlrev_b32 v5, 4, v2
    v_add_u32 v5, {LDS_C+2048}, v5
    s_lshl_b32 s25, s23, 7
    v_add_u32 v6, s25, v5
    s_lshr_b32 s24, s2, 2
    s_lshl_b32 s24, s24, 8         ; b*2048 + region*256
    s_and_b32 s25, s2, 1
    s_lshl_b32 s25, s25, 7
    s_add_u32 s24, s24, s25
    s_and_b32 s25, s2, 2
    s_lshl_b32 s25, s25, 2
    s_add_u32 s24, s24, s25
    v_lshlrev_b32 v7, 4, v2
    ''')
    def issue3(base):
        for u in range(4):
            a(f'buffer_load_dwordx4 v[{base+4*u}:{base+3+4*u}], v1, s[36:39], s{40+u} offen sc1')
    chk3 = pingpong(a, 's3', issue3, 16, 4, 192, 208, 48, opt)
    pingpong_loop(a, 's3', issue3, 16, 4, 192, 208, chk3, opt)
    for e in range(4):
        a(f'v_add_f32 v{32+e}, v{192+e}, v{196+e}')
        a(f'v_add_f32 v{40+e}, v{200+e}, v{204+e}')
    for e in range(4):
        a(f'v_add_f32 v{32+e}, v{32+e}, v{40+e}')
    a('s_nop 1')
    for e in range(4):
        a(f'v_add_f32_dpp v{32+e}, v{32+e}, v{32+e} row_ror:8 row_mask:0xf bank_mask:0xf')
    for sw in ('v_permlane16_swap_b32', 'v_permlane32_swap_b32'):
        for e in range(4):
            a(f'v_mov_b32 v{36+e}, v{32+e}')
        a('s_nop 0')
        for e in range(4):
            a(f'{sw} v{32+e}, v{36+e}')
        a('s_nop 0')
        for e in range(4):
            a(f'v_add_f32 v{32+e}, v{32+e}, v{36+e}')
    a('''
    s_mov_b64 exec, 0xff
    ds_write_b128 v6, v[32:35]
    s_waitcnt lgkmcnt(0)
    s_barrier                      ; B4
    s_cmp_lg_u32 s23, 0
    s_cbranch_scc1 L_h_end2
    ''')
    for w in range(4):
        a(f'ds_read_b128 v[{32+4*w}:{35+4*w}], v5 offset:{128*w}')
    a('s_waitcnt lgkmcnt(0)')
    for e in range(4):
        a(f'v_add_f32 v{32+e}, v{32+e}, v{36+e}')
        a(f'v_add_f32 v{40+e}, v{40+e}, v{44+e}')
    for e in range(4):
        a(f'v_add_f32 v{32+e}, v{32+e}, v{40+e}')
    a('''
    v_cvt_pk_bf16_f32 v32, v32, v33
    v_cvt_pk_bf16_f32 v33, v34, v35
    buffer_store_dwordx2 v[32:33], v7, s[32:35], s24 offen
    ''')
    a.label('L_h_end2')
    a('s_mov_b64 exec, -1')
    a.label('L_h_end')
    TS(7)
    TS_flush(8)
    a.label('L_done')
    a('s_endpgm')
    a.raw('.section .rodata,"a"')
    a.raw('.p2align 6')
    a.raw(f'.amdhsa_kernel {NAME}')
    a.raw('  .amdhsa_next_free_vgpr 256')
    a.raw('  .amdhsa_next_free_sgpr 96')
    a.raw('  .amdhsa_accum_offset 256')
    a.raw('  .amdhsa_group_segment_fixed_size 0')
    a.raw('  .amdhsa_kernarg_size 64')
    a.raw('  .amdhsa_user_sgpr_count 2')
    a.raw('  .amdhsa_user_sgpr_kernarg_segment_ptr 1')
    a.raw('  .amdhsa_system_sgpr_workgroup_id_x 1')
    a.raw('.end_amdhsa_kernel')
    return a.text().replace('LOOKAHEAD', str(opt.la)).replace('NS_TILES', str(2*opt.nsb))

if __name__ == '__main__':
    p = argparse.ArgumentParser()
    p.add_argument('out')
    p.add_argument('--ldflag', default='nt')
    p.add_argument('--depth', type=int, default=6)
    p.add_argument('--ts', action='store_true')
    p.add_argument('--nsb', type=int, default=6)
    p.add_argument('--la', type=int, default=1)
    p.add_argument('--pp_lsleep', type=int, default=0)
    p.add_argument('--touch', type=int, default=0)
    p.add_argument('--pp_sleep', type=int, default=5)
    p.add_argument('--n1', type=int, default=24)
    p.add_argument('--depth1', type=int, default=6)
    p.add_argument('--switch', type=int, default=32)
    p.add_argument('--n0', type=int, default=4)
    p.add_argument('--b0w', type=int, default=0)
    p.add_argument('--noq', action='store_true')
    p.add_argument('--sleep1', type=int, default=8)
    p.add_argument('--sleep2', type=int, default=4)
    opt = p.parse_args()
    open(opt.out, 'w').write(gen(opt))
```

```python
import sys, struct, argparse

HEADER = open('standalone__gqa_block_cached__decode.s.ref').read().split('; Override launch')[0]
NAME = 'standalone__gqa_block_cached__decode_kernel'

DOC = """
Fused GQA decode: q = x@wq, flash-decode attention over the KV cache, out = o@wo, in ONE launch.
256 workgroups (one per CU, all co-resident), 8 waves each:
  waves 0-3 (stream): read K (LDS-DMA, XOR-swizzled) and V (registers) with a paced load stream; MFMA QK^T,
     online softmax with the true running max, MFMA PV. 12 of 16 tiles per wave are fixed, the rest are
     handed out through per-(b,hkv) ticket counters (reset in d_ws before use) so that slower dies do less.
  wave 4: q projection partial (64 cols x 256 rows of wq), then gathers the group's q partials -> LDS.
  wave 5: writes the sentinel into this workgroup's hand-off slots and counts in (d_debug counters).
  wave 6: fetches tickets.  wave 7: (m, l) of the workgroup.
  waves 4-7: prefetch a 32-row x 512-col slice of wo, combine the 32 split partials of 32 o-values,
     multiply by the wo slice (MFMA); workgroups 0-63 then sum the 128 partial outputs and write bf16.
Hand-offs through d_ws: every word is written sc1 and is valid once it differs from the sentinel 0xffffffff
(data equal to it is mapped to 0xfffffffe); slots are reset by their owner before anyone may read them.
"""

class A:
    def __init__(self):
        self.l = []
    def __call__(self, s):
        for line in s.strip('\n').split('\n'):
            if line.strip():
                self.l.append('    ' + line.strip())
    def label(self, s):
        self.l.append(s + ':')
    def raw(self, s):
        self.l.append(s)
    def extend(self, lines):
        self.l.extend(lines)
    def text(self):
        return '\n'.join(self.l) + '\n'

WS_QP = 0
WS_PO = 0x20000
WS_ML = WS_PO + 0x100000
WS_OP = WS_ML + 0x4000
WS_TS = WS_OP + 0x100000
WS_TK = WS_TS + 0x20000
WS_END = WS_TK + 0x8000

SCALE_LOG2E = 0.08838834764831845 * 1.4426950408889634
def fbits(f):
    return '0x%08x' % struct.unpack('<I', struct.pack('<f', f))[0]

def srd(a, d, base, nbytes):
    a(f's_mov_b32 s{d}, s{base}')
    a(f's_and_b32 s{d+1}, s{base+1}, 0xffff')
    a(f's_mov_b32 s{d+2}, {nbytes:#x}')
    a(f's_mov_b32 s{d+3}, 0x20000')

SEL_LO, SEL_HI = 90, 91
def perm_pair(a, dst, blk, q, hi):
    sel = SEL_HI if hi else SEL_LO
    for u in range(4):
        a(f'v_perm_b32 v{dst+u}, v{blk+4*(2*u+1)+q}, v{blk+4*(2*u)+q}, s{sel}')

def xlane(a, op, v, t, which):
    sw = 'v_permlane16_swap_b32' if which == 16 else 'v_permlane32_swap_b32'
    a(f'v_mov_b32 v{t}, v{v}\ns_nop 1\n{sw} v{v}, v{t}\ns_nop 1\n{op} v{v}, v{v}, v{t}')

def pingpong(a, tag, issue, nregs, nloads, A0, B0, T0, opt):
    def check(base, dst, cmp):
        regs = list(range(base, base + nregs))
        a(f'v_max3_u32 v{T0}, v{regs[0]}, v{regs[1]}, v{regs[2]}')
        a(f'v_max3_u32 v{T0+1}, v{regs[3]}, v{regs[4]}, v{regs[5]}')
        k = 6
        t = 0
        while k + 1 < nregs:
            a(f'v_max3_u32 v{T0+t}, v{T0+t}, v{regs[k]}, v{regs[k+1]}')
            k += 2
            t ^= 1
        assert k == nregs
        a(f'v_max_u32 v{T0}, v{T0}, v{T0+1}')
        a(f'{cmp} {dst}, -1, v{T0}')
    for r in range(nregs):
        a(f'v_mov_b32 v{B0+r}, -1')
    a('s_mov_b64 s[50:51], -1')
    a(f's_mov_b32 s60, {SPIN}')
    return check

def pingpong_loop(a, tag, issue, nregs, nloads, A0, B0, check, opt):
    issue(A0)
    if opt.pp_sleep:
        a(f's_sleep {opt.pp_sleep}')
    a.label(f'L_{tag}_loop')
    issue(B0)
    a('s_mov_b64 exec, -1')
    a(f's_waitcnt vmcnt({nloads})')
    check(A0, 's[50:51]', 'v_cmp_eq_u32')
    a('s_mov_b64 exec, s[50:51]')
    a(f's_cbranch_execz L_{tag}_ok')
    if opt.pp_lsleep:
        a(f's_sleep {opt.pp_lsleep}')
    issue(A0)
    a('s_mov_b64 exec, -1')
    a(f's_waitcnt vmcnt({nloads})')
    check(B0, 'vcc', 'v_cmp_ne_u32')
    a('s_and_b64 exec, vcc, s[50:51]')
    for r in range(nregs):
        a(f'v_mov_b32 v{A0+r}, v{B0+r}')
    a('s_andn2_b64 exec, s[50:51], vcc')
    a(f's_cbranch_execz L_{tag}_ok')
    if opt.pp_lsleep:
        a(f's_sleep {opt.pp_lsleep}')
    a('s_sub_u32 s60, s60, 1')
    a('s_cmp_lg_u32 s60, 0')
    a(f's_cbranch_scc1 L_{tag}_loop')
    a.label(f'L_{tag}_ok')
    a('s_mov_b64 exec, -1')

LDS_RING = 32768
LDS_Q = 4*LDS_RING
LDS_ML = LDS_Q + 2048
LDS_PW = LDS_Q + 2432
LDS_MB = LDS_Q + 2560
LDS_C = LDS_Q + 4096
LDS_TOTAL = LDS_Q + 8192
KD, KR, QF, SB, OB, KF, VS = 8, 12, 16, 32, 64, 96, 128
SPIN = 400000

def gen(opt):
    a = A()
    ld = opt.ldflag
    def TS(idx, tgt=None):
        if opt.ts:
            (tgt or a)(f's_memrealtime s[62:63]\ns_waitcnt lgkmcnt(0)\ns_mov_b32 s{64+idx}, s62')
    def TS_flush(nidx):
        if opt.ts:
            a(f'''
            s_lshl_b32 s62, s2, 9
            s_lshl_b32 s63, s27, 6
            s_add_u32 s62, s62, s63
            s_add_u32 s62, s62, {WS_TS:#x}
            v_mov_b32 v1, 0
            s_mov_b64 exec, 1
            ''')
            for i in range(nidx):
                a(f'v_mov_b32 v2, s{64+i}\nbuffer_store_dword v2, v1, s[36:39], s62 offen offset:{4*i}\ns_nop 1')
            a('s_mov_b64 exec, -1')

    a.raw(HEADER.rstrip('\n'))
    a.raw(f'; @launch grid=(256,1,1) block=(512,1,1) lds={LDS_TOTAL}')
    for line in DOC.strip('\n').split('\n'):
        a.raw('; ' + line)
    a.raw('.amdgcn_target "amdgcn-amd-amdhsa--gfx950"')
    a.raw('.text')
    a.raw(f'.globl {NAME}')
    a.raw('.p2align 8')
    a.raw(f'.type {NAME},@function')
    a.label(NAME)
    a('s_cmp_ge_u32 s2, 256')
    a('s_cbranch_scc1 L_done')
    a('s_load_dwordx16 s[4:19], s[0:1], 0')
    TS(0)
    a(f'''
    s_mov_b32 s{SEL_LO}, 0x05040100
    s_mov_b32 s{SEL_HI}, 0x07060302
    v_lshrrev_b32 v1, 6, v0
    s_lshr_b32 s20, s2, 6          ; hkv
    s_bfe_u32 s21, s2, 0x10005     ; b = (wg>>5)&1
    v_readfirstlane_b32 s23, v1
    s_and_b32 s22, s2, 31          ; split
    v_and_b32 v0, 63, v0           ; lane
    v_and_b32 v3, 15, v0           ; l&15
    v_lshrrev_b32 v4, 4, v0        ; g
    s_mov_b32 s27, s23
    s_cmp_ge_u32 s23, 4
    s_cbranch_scc1 L_helper
    ''')
    a('''
    v_lshlrev_b32 v1, 4, v3
    v_lshl_add_u32 v1, v4, 10, v1  ; vVoff = g*1024 + (l&15)*16
    s_lshl_b32 s51, s21, 2
    s_add_u32 s51, s51, s20
    s_lshl_b32 s52, s51, 19
    s_mov_b32 s53, s52
    s_add_u32 s55, s51, NS_TILES
    s_lshl_b32 s51, s51, 23
    s_lshl_b32 s25, s23, 12
    s_add_u32 s54, s51, s25
    s_mov_b32 s58, LOOKAHEAD
    s_lshl_b32 s25, s22, 2
    s_add_u32 s25, s25, s23
    s_lshl_b32 s25, s25, 12
    s_add_u32 s51, s51, s25
    s_add_u32 s24, s51, s52
    s_mov_b32 s25, s24
    s_lshl_b32 s50, s23, 15
    v_lshlrev_b32 v5, 8, v4        ; g*256
    v_lshlrev_b32 v6, 8, v3        ; r*256
    v_add_u32 v6, s50, v6
    ''')
    for i in range(4):
        a(f'v_add_u32 v7, {4*i}, v4')
        a('v_xor_b32 v7, v7, v3')
        a(f'v_lshl_add_u32 v{KD+i}, v7, 4, v5')
        a(f'v_lshl_add_u32 v{KR+i}, v7, 4, v6')
    a('s_waitcnt lgkmcnt(0)')
    srd(a, 28, 6, 0x4000000)
    srd(a, 32, 8, 0x4000000)
    srd(a, 36, 18, WS_END)

    order = [('K', 0), ('K', 1), ('K', 2), ('K', 3), ('V', 0), ('V', 1), ('V', 2), ('V', 3),
             ('K', 4), ('K', 5), ('V', 4), ('V', 5)]
    NSB = opt.nsb
    if NSB == 7:
        order = order[:8] + [('K', 4), ('K', 5), ('K', 6), ('V', 4), ('V', 5), ('V', 6)]
    NS = 2*NSB
    NT = (16 - NS)*32
    last_idx = {}
    for n, key in enumerate(order):
        last_idx[key] = 8*n + 7
    issued = [0]
    def load_pair(blk, pi):
        kind, i = blk
        t = A()
        D = opt.depth1 if issued[0] < opt.switch else opt.depth
        if issued[0] == opt.n0:
            t('s_barrier')
        if issued[0] == opt.n1:
            t(f'v_mov_b32 v2, {LDS_C+4}')
            t('v_mov_b32 v5, 1')
            t('ds_write_b32 v2, v5')
        if issued[0] >= D - 1:
            t(f's_waitcnt vmcnt({D-2})')
        u, jj = pi // 2, (pi % 2)*2
        if kind == 'K':
            if jj == 0:
                t(f's_add_u32 m0, s50, {(i % 4)*8192 + u*4096}')
                t('s_nop 0')
            for j in (jj, jj+1):
                t(f'buffer_load_dwordx4 v{KD+j}, s[28:31], s24 offen offset:{1024*j} {ld} lds')
            if jj == 2:
                t('s_add_u32 s52, s52, 0x80000')
                t('s_and_b32 s52, s52, 0x7fffff')
                t('s_add_u32 s24, s51, s52')
        else:
            base = VS + 32*(i % 4)
            for j in (jj, jj+1):
                r = base + 16*u + 4*j
                t(f'buffer_load_dwordx4 v[{r}:{r+3}], v1, s[32:35], s25 offen offset:{256*j} {ld}')
            if jj == 2:
                t('s_add_u32 s53, s53, 0x80000')
                t('s_and_b32 s53, s53, 0x7fffff')
                t('s_add_u32 s25, s51, s53')
        issued[0] += 2
        return t.l
    def need(key):
        return ('NEED', key)

    def atom_qk(i):
        t = A()
        t.l.append(need(('K', i)))
        for u in range(2):
            for j in range(4):
                t(f'ds_read_b128 v[{KF+16*u+4*j}:{KF+16*u+4*j+3}], v{KR+j} offset:{(i % 4)*8192 + u*4096}')
        for u in range(2):
            t(f's_waitcnt lgkmcnt({4*(1-u)})')
            d = SB + 8*(i % 4) + 4*u
            for j in range(4):
                c = '0' if j == 0 else f'v[{d}:{d+3}]'
                r = KF + 16*u + 4*j
                t(f'v_mfma_f32_16x16x32_bf16 v[{d}:{d+3}], v[{r}:{r+3}], v[{QF+4*j}:{QF+4*j+3}], {c}')
        return t.l
    def atom_softmax(chunk, n=32):
        t = A()
        t('s_nop 7')
        t(f'v_max3_f32 v6, v{SB}, v{SB+1}, v{SB+2}')
        t(f'v_max3_f32 v7, v{SB+3}, v{SB+4}, v{SB+5}')
        k = 6
        while k < n:
            t(f'v_max3_f32 v6, v6, v{SB+k}, v{SB+k+1}')
            if k + 2 < n:
                t(f'v_max3_f32 v7, v7, v{SB+k+2}, v{SB+k+3}')
            k += 4
        t('v_max_f32 v6, v6, v7')
        t('s_nop 0')
        xlane(t, 'v_max_f32', 6, 7, 32)
        t('s_nop 0')
        xlane(t, 'v_max_f32', 6, 7, 16)
        if chunk == 0:
            t('v_mul_f32 v2, s42, v6')
            t('v_mov_b32 v5, 0')
        else:
            t('v_mul_f32 v6, s42, v6')
            t('v_max_f32 v6, v6, v2')
            t('v_sub_f32 v7, v2, v6')
            t('v_exp_f32 v7, v7              ; alpha')
            t('v_mov_b32 v2, v6')
            t('v_mul_f32 v5, v5, v7')
            for k in range(32):
                t(f'v_mul_f32 v{OB+k}, v{OB+k}, v7')
        t('v_mov_b32 v6, 0')
        for k in range(n):
            t(f'v_fma_f32 v{SB+k}, v{SB+k}, s42, -v2')
        for k in range(n):
            t(f'v_exp_f32 v{SB+k}, v{SB+k}')
        t('s_nop 0')
        for k in range(0, n, 2):
            t(f'v_add_f32 v5, v5, v{SB+k}')
            t(f'v_add_f32 v6, v6, v{SB+k+1}')
            t(f'v_cvt_pk_bf16_f32 v{SB+k//2}, v{SB+k}, v{SB+k+1}')
        t('v_add_f32 v5, v5, v6')
        return t.l
    def atom_pv(i):
        t = A()
        t.l.append(need(('V', i)))
        base = VS + 32*(i % 4)
        p = SB + 4*(i % 4)
        for q in range(4):
            for hi in range(2):
                e = 2*q + hi
                tmp = KF + 4*(e % 4)
                perm_pair(t, tmp, base, q, hi)
                t('s_nop 1')
                d = OB + 4*e
                c = '0' if i == 0 else f'v[{d}:{d+3}]'
                t(f'v_mfma_f32_16x16x32_bf16 v[{d}:{d+3}], v[{tmp}:{tmp+3}], v[{p}:{p+3}], {c}')
        return t.l
    def emit(lines):
        for ln in lines:
            if isinstance(ln, tuple):
                n = issued[0] - 1 - last_idx[ln[1]]
                assert n >= 0, ln
                a(f's_waitcnt vmcnt({min(n, 63)})')
            else:
                a.raw(ln)
    def segment(blk, atoms):
        lines = [x for at in atoms for x in at]
        n = len(lines)
        cuts = [n*k//4 for k in range(5)]
        for pi in range(4):
            a.extend(load_pair(blk, pi))
            emit(lines[cuts[pi]:cuts[pi+1]])

    for blk in order[:8]:
        segment(blk, [])
    for r in range(16):
        a(f'v_mov_b32 v{QF+r}, 0')
    a(f'''
    v_lshlrev_b32 v7, 8, v3
    v_lshl_add_u32 v7, v4, 4, v7   ; h*256 + 16g
    v_add_u32 v7, {LDS_Q}, v7
    s_mov_b32 s40, 0x00ff00ff
    s_mov_b32 s41, 0x00ff00ff
    s_mov_b32 s42, {fbits(SCALE_LOG2E)}
    ''')
    TS(1)
    a('''
    s_barrier
    s_mov_b64 exec, s[40:41]
    ''')
    for j in range(4):
        a(f'ds_read_b128 v[{QF+4*j}:{QF+4*j+3}], v7 offset:{64*j}')
    a('s_mov_b64 exec, -1')
    TS(2)
    a('s_waitcnt lgkmcnt(0)')
    emit(atom_qk(0))
    segment(('K', 4), [atom_qk(1), atom_qk(2), atom_qk(3)])
    segment(('K', 5), [atom_softmax(0), atom_pv(0)])
    if NSB == 6:
        segment(('V', 4), [atom_pv(1), atom_pv(2), atom_pv(3)])
    else:
        segment(('K', 6), [atom_pv(1), atom_pv(2)])
        segment(('V', 4), [atom_pv(3), atom_qk(4)])
    TS(3)
    def request0():
        a(f'''
        v_mov_b32 v6, {LDS_PW}
        v_mov_b32 v7, {opt.la}
        s_mov_b32 s59, {SPIN}
        s_cmp_lg_u32 s23, 0
        s_cbranch_scc1 L_noreq0
        ds_write_b32 v6, v7
        ''')
        a.label('L_noreq0')
    if NSB == 6:
        request0()
        segment(('V', 5), [atom_qk(4), atom_qk(5)])
    else:
        segment(('V', 5), [atom_qk(5), atom_qk(6)])
        request0()
        segment(('V', 6), [atom_softmax(1, 24)])
    a(f'v_mov_b32 v120, {LDS_MB}')
    a(f'v_mov_b32 v121, {LDS_PW}')
    DSL = 8192*(NSB % 4)
    DV = VS + 32*(NSB % 4)
    DS_, DP = SB + 24, SB + 28
    def dyn_issue(slot, tag):
        a.label(f'L_mb{tag}')
        a(f'''
        ds_read_b32 v122, v120
        s_waitcnt lgkmcnt(0)
        v_readfirstlane_b32 s56, v122
        s_cmp_lg_u32 s56, -1
        s_cbranch_scc1 L_mb{tag}_ok
        s_sleep 1
        s_sub_u32 s59, s59, 1
        s_cmp_lg_u32 s59, 0
        s_cbranch_scc1 L_mb{tag}
        ''')
        a.label(f'L_mb{tag}_ok')
        a(f'''
        v_add_u32 v120, 4, v120
        s_cmp_lt_u32 s56, {NT}
        s_cselect_b32 s57, 1, 0
        s_cselect_b32 s24, s23, 1
        s_cmp_lg_u32 s24, 0
        s_cbranch_scc1 L_mb{tag}_nr
        s_add_u32 s58, s58, 1
        v_mov_b32 v122, s58
        ds_write_b32 v121, v122
        ''')
        a.label(f'L_mb{tag}_nr')
        a(f'''
        s_lshr_b32 s24, s56, 5
        s_add_u32 s24, s24, s55
        s_and_b32 s24, s24, 15
        s_lshl_b32 s24, s24, 19
        s_add_u32 s24, s24, s54
        s_and_b32 s25, s56, 31
        s_lshl_b32 s25, s25, 14
        s_add_u32 s24, s24, s25
        s_add_u32 m0, s50, {DSL + 4096*slot}
        s_cmp_lg_u32 s57, 0
        s_cselect_b32 s24, s24, 0x7ff00000
        ''')
        for j in range(4):
            a(f'buffer_load_dwordx4 v{KD+j}, s[28:31], s24 offen offset:{1024*j} {ld} lds')
        for j in range(4):
            r = DV + 16*slot + 4*j
            a(f'buffer_load_dwordx4 v[{r}:{r+3}], v1, s[32:35], s24 offen offset:{256*j} {ld}')
    def dyn_compute(slot, tag):
        a('s_waitcnt vmcnt(12)')
        for j in range(4):
            a(f'ds_read_b128 v[{KF+4*j}:{KF+4*j+3}], v{KR+j} offset:{DSL + 4096*slot}')
        for j in range(4):
            a(f's_waitcnt lgkmcnt({3-j})')
            c = '0' if j == 0 else f'v[{DS_}:{DS_+3}]'
            a(f'v_mfma_f32_16x16x32_bf16 v[{DS_}:{DS_+3}], v[{KF+4*j}:{KF+4*j+3}], v[{QF+4*j}:{QF+4*j+3}], {c}')
        a('s_nop 7')
        a(f'v_max3_f32 v6, v{DS_}, v{DS_+1}, v{DS_+2}')
        a(f'v_max_f32 v6, v6, v{DS_+3}')
        a('s_nop 0')
        xlane(a, 'v_max_f32', 6, 7, 32)
        a('s_nop 0')
        xlane(a, 'v_max_f32', 6, 7, 16)
        a(f'''
        v_mul_f32 v6, s42, v6
        v_cmp_gt_f32 vcc, v6, v2
        s_cbranch_vccz L_nors{tag}
        v_max_f32 v6, v6, v2
        v_sub_f32 v7, v2, v6
        v_exp_f32 v7, v7
        v_mov_b32 v2, v6
        v_mul_f32 v5, v5, v7
        ''')
        for k in range(32):
            a(f'v_mul_f32 v{OB+k}, v{OB+k}, v7')
        a.label(f'L_nors{tag}')
        for k in range(4):
            a(f'v_fma_f32 v{DS_+k}, v{DS_+k}, s42, -v2')
        for k in range(4):
            a(f'v_exp_f32 v{DS_+k}, v{DS_+k}')
        a(f'''
        s_waitcnt vmcnt(8)
        v_add_f32 v6, v{DS_}, v{DS_+1}
        v_add_f32 v7, v{DS_+2}, v{DS_+3}
        v_cvt_pk_bf16_f32 v{DP}, v{DS_}, v{DS_+1}
        v_cvt_pk_bf16_f32 v{DP+1}, v{DS_+2}, v{DS_+3}
        v_add_f32 v5, v5, v6
        v_add_f32 v5, v5, v7
        ''')
        base = DV + 16*slot
        for q in range(4):
            for hi in range(2):
                e = 2*q + hi
                tmp = KF + 16 + 2*(e % 4)
                sel = SEL_HI if hi else SEL_LO
                a(f'v_perm_b32 v{tmp}, v{base+4+q}, v{base+q}, s{sel}')
                a(f'v_perm_b32 v{tmp+1}, v{base+12+q}, v{base+8+q}, s{sel}')
                a('s_nop 1')
                d = OB + 4*e
                a(f'v_mfma_f32_16x16x16_bf16 v[{d}:{d+3}], v[{tmp}:{tmp+1}], v[{DP}:{DP+1}], v[{d}:{d+3}]')
    dyn_issue(0, 'a')
    issued[0] += 8
    if NSB == 6:
        emit(atom_softmax(1, 16))
    for i in range(4, NSB):
        emit(atom_pv(i))
    a(f'''
    s_lshl_b32 s43, s23, 6
    v_lshlrev_b32 v53, 3, v3
    v_add_u32 v53, s43, v53        ; wave*64 + h*8
    v_add_u32 v53, {LDS_ML}, v53
    v_mul_u32_u24 v48, 528, v3
    v_lshl_add_u32 v48, v4, 7, v48
    v_add_u32 v48, s50, v48
    s_lshl_b32 s43, s23, 1
    v_lshrrev_b32 v52, 5, v0
    v_add_u32 v52, s43, v52
    v_and_b32 v6, 31, v0           ; quad
    v_lshlrev_b32 v49, 9, v52
    v_lshl_add_u32 v49, v6, 4, v49 ; h*512 + quad*16
    v_lshl_add_u32 v50, v52, 4, v49 ; h*528 + quad*16
    v_add_u32 v51, {2*LDS_RING}, v50
    v_lshlrev_b32 v52, 3, v52      ; h*8
    v_add_u32 v52, {LDS_ML}, v52
    s_lshl_b32 s43, s2, 12
    s_add_u32 s43, s43, {WS_PO:#x}
    ''')
    TS(4)
    a('s_cmp_eq_u32 s57, 0')
    a('s_cbranch_scc1 L_dyn_done')
    a.label('L_dyn_loop')
    dyn_issue(1, 'b')
    dyn_compute(0, 'b')
    a('s_cmp_eq_u32 s57, 0')
    a('s_cbranch_scc1 L_dyn_done')
    dyn_issue(0, 'c')
    dyn_compute(1, 'c')
    a('s_cmp_lg_u32 s57, 0')
    a('s_cbranch_scc1 L_dyn_loop')
    a.label('L_dyn_done')
    TS(5)
    a('s_nop 6')
    a('s_mov_b64 exec, s[40:41]')
    for i in range(8):
        a(f'ds_write_b128 v48, v[{OB+4*i}:{OB+4*i+3}] offset:{16*i}')
    a('s_mov_b64 exec, -1')
    xlane(a, 'v_add_f32', 5, 6, 32)
    a('s_nop 0')
    xlane(a, 'v_add_f32', 5, 6, 16)
    a('''
    v_mov_b32 v4, v2
    s_mov_b64 exec, 0xff
    ds_write_b64 v53, v[4:5]
    s_mov_b64 exec, -1
    v_mov_b32 v8, v49
    s_waitcnt lgkmcnt(0)
    ''')
    a('s_barrier')
    for w in range(4):
        a(f'ds_read_b64 v[{40+2*w}:{41+2*w}], v52 offset:{64*w}')
    for w in range(4):
        a(f'ds_read_b128 v[{16+4*w}:{19+4*w}], v{50 if w < 2 else 51} offset:{LDS_RING*(w % 2)}')
    a(f'''
    s_waitcnt lgkmcnt(4)
    v_max_f32 v32, v40, v42
    v_max3_f32 v32, v32, v44, v46   ; M
    v_sub_f32 v40, v40, v32
    v_sub_f32 v42, v42, v32
    v_sub_f32 v44, v44, v32
    v_sub_f32 v46, v46, v32
    v_exp_f32 v40, v40
    v_exp_f32 v42, v42
    v_exp_f32 v44, v44
    v_exp_f32 v46, v46
    s_waitcnt lgkmcnt(0)
    ''')
    for e in range(4):
        a(f'v_mul_f32 v{36+e}, v40, v{16+e}')
    for e in range(4):
        a(f'v_fmac_f32 v{36+e}, v42, v{20+e}')
    for e in range(4):
        a(f'v_fmac_f32 v{36+e}, v44, v{24+e}')
    for e in range(4):
        a(f'v_fmac_f32 v{36+e}, v46, v{28+e}')
    for e in range(4):
        a(f'v_min_u32 v{36+e}, -2, v{36+e}')
    a('''
    buffer_store_dwordx4 v[36:39], v8, s[36:39], s43 offen sc1
    s_barrier
    ''')
    TS(6)
    TS(7)
    TS_flush(8)
    a('s_endpgm')

    a.label('L_helper')
    a('''
    s_setprio 3
    s_sub_u32 s23, s23, 4          ; hw
    s_and_b32 s46, s2, 1           ; ch
    s_bfe_u32 s47, s2, 0x50001
    s_lshl_b32 s48, s20, 5
    s_add_u32 s48, s48, s47
    s_waitcnt lgkmcnt(0)
    ''')
    srd(a, 36, 18, WS_END)
    a('''
    s_and_b32 s21, s2, 15          ; cblk
    s_bfe_u32 s22, s2, 0x20004
    v_lshlrev_b32 v1, 4, v0
    s_lshl_b32 s52, s22, 15        ; kq*32768
    s_lshl_b32 s25, s20, 12        ; 1024hkv*4
    s_add_u32 s52, s52, s25
    s_lshl_b32 s25, s21, 8         ; 64cblk*4
    s_add_u32 s52, s52, s25
    s_add_u32 s53, s52, 16384
    s_cmp_eq_u32 s23, 0
    s_cbranch_scc1 L_h0
    s_cmp_eq_u32 s23, 1
    s_cbranch_scc1 L_h1
    ''')
    if opt.touch:
        a('''
        s_cmp_lg_u32 s23, 2
        s_cbranch_scc1 L_h23
        s_bfe_u32 s24, s2, 0x10005     ; b
        s_lshl_b32 s24, s24, 2
        s_add_u32 s24, s24, s20
        s_lshl_b32 s24, s24, 23
        s_and_b32 s25, s2, 31
        s_lshl_b32 s25, s25, 18
        s_add_u32 s24, s24, s25
        v_mov_b32 v8, s24
        s_lshl_b32 s25, s48, 16
        v_mov_b32 v9, s25
        v_mov_b32 v10, 0
        s_mov_b64 exec, 1
        global_load_dword v11, v8, s[8:9]
        global_load_dword v12, v9, s[12:13]
        global_load_dword v13, v10, s[14:15]
        s_mov_b64 exec, -1
        ''')
        a.label('L_h23')
    a('''
    s_barrier                      ; B0
    s_branch L_h_notq
    ''')
    a.label('L_h1')
    a(f'''
    v_mov_b32 v6, 0
    v_mov_b32 v7, {LDS_C}
    ds_write_b32 v7, v6            ; flag = 0
    ds_write_b32 v7, v6 offset:4
    v_mov_b32 v9, {LDS_PW}
    ds_write_b32 v9, v6
    v_mov_b32 v8, -1
    v_lshlrev_b32 v9, 2, v0
    v_add_u32 v9, {LDS_MB}, v9
    ds_write_b32 v9, v8
    ds_write_b32 v9, v8 offset:256
    ds_write_b32 v9, v8 offset:512
    ds_write_b32 v9, v8 offset:768
    v_mov_b32 v9, -1
    v_mov_b32 v10, -1
    v_mov_b32 v11, -1
    s_lshl_b32 s43, s2, 12
    s_add_u32 s43, s43, {WS_PO:#x}
    s_lshl_b32 s44, s2, 6
    s_add_u32 s44, s44, {WS_ML:#x}
    s_lshl_b32 s24, s48, 13        ; p*8192
    s_lshl_b32 s25, s46, 11        ; ch*2048
    s_add_u32 s24, s24, s25
    s_add_u32 s24, s24, {WS_OP:#x}
    s_add_u32 s25, s24, 4096
    s_mov_b64 exec, 0xffff
    buffer_store_dwordx4 v[8:11], v1, s[36:39], s52 offen sc1
    buffer_store_dwordx4 v[8:11], v1, s[36:39], s53 offen sc1
    s_mov_b64 exec, 0xf
    buffer_store_dwordx4 v[8:11], v1, s[36:39], s44 offen sc1
    s_mov_b64 exec, -1
    ''')
    for i in range(4):
        a(f'buffer_store_dwordx4 v[8:11], v1, s[36:39], s43 offen offset:{1024*i} sc1')
    for i in range(4):
        a(f'buffer_store_dwordx4 v[8:11], v1, s[36:39], s{24 + i//2} offen offset:{1024*(i & 1)} sc1')
    a(f'''
    s_and_b32 s24, s2, 31
    s_cmp_lg_u32 s24, 0
    s_cbranch_scc1 L_h1_notk
    s_lshr_b32 s24, s2, 5          ; 2*hkv + b
    s_lshl_b32 s24, s24, 12
    s_add_u32 s24, s24, {WS_TK:#x}
    v_mov_b32 v12, 0
    v_mov_b32 v13, 0
    v_mov_b32 v14, 0
    v_mov_b32 v15, 0
    s_mov_b64 exec, 0xff
    buffer_store_dwordx4 v[12:15], v1, s[36:39], s24 offen sc1
    s_mov_b64 exec, -1
    ''')
    a.label('L_h1_notk')
    a(f'''
    s_lshl_b32 s26, s20, 6
    v_mov_b32 v2, s26
    v_mov_b32 v5, 1
    v_mov_b32 v6, 2
    v_and_b32 v12, 3, v0
    v_lshlrev_b32 v12, 6, v12
    s_mov_b32 s60, {SPIN}
    s_waitcnt lgkmcnt(0)
    s_barrier                      ; B0
    s_waitcnt vmcnt(0)
    s_mov_b64 exec, 1
    global_atomic_add v2, v5, s[16:17] sc1
    ds_write_b32 v7, v5            ; flag = 1
    s_mov_b64 exec, 0xf
    ''')
    TS(1)
    a('s_mov_b64 exec, -1')
    a('s_branch L_h_notq')
    a.label('L_h0')
    srd(a, 28, 10, 0x800000)
    srd(a, 32, 4, 0x1000)
    a('''
    v_and_b32 v9, 7, v3            ; c
    v_lshrrev_b32 v10, 3, v3       ; a
    v_lshlrev_b32 v5, 18, v10      ; 32a * 8192
    v_lshlrev_b32 v6, 16, v4       ; 8g * 8192
    v_lshlrev_b32 v7, 4, v9        ; 16c
    v_add3_u32 v5, v5, v6, v7
    v_and_b32 v6, 1, v0            ; b = m&1
    v_lshlrev_b32 v6, 11, v6       ; b*2048
    v_bfe_u32 v7, v0, 1, 1         ; a' = (m>>1)&1
    v_lshlrev_b32 v7, 6, v7        ; 64a'
    v_lshlrev_b32 v8, 4, v4        ; 16g
    v_add3_u32 v6, v6, v7, v8
    s_lshl_b32 s24, s22, 21        ; 256kq*8192
    s_lshl_b32 s25, s20, 11        ; 1024hkv*2
    s_add_u32 s24, s24, s25
    s_lshl_b32 s25, s21, 7         ; 64cblk*2
    s_add_u32 s24, s24, s25
    s_lshl_b32 s26, s22, 9
    ''')
    for w in range(4):
        a(f'buffer_load_dwordx4 v[{16+4*w}:{19+4*w}], v6, s[32:35], s26 offen offset:{128*w}')
    for w in range(4):
        for t_ in range(8):
            r = 64 + 32*w + 4*t_
            a(f'buffer_load_dwordx4 v[{r}:{r+3}], v5, s[28:31], s24 offen {ld}')
            a(f's_add_u32 s24, s24, {8192 if t_ < 7 else 8192*57}')
    for w in range(4):
        if w == 0:
            a('s_barrier                      ; B0')
        a(f's_waitcnt vmcnt({8*(3-w)})')
        if w == 3:
            TS(1)
        for q in range(4):
            for hi in range(2):
                i = 2*q + hi
                tmp = 192 + 4*(i % 4)
                perm_pair(a, tmp, 64 + 32*w, q, hi)
                a('s_nop 1')
                c = '0' if w == 0 else f'v[{32+4*i}:{35+4*i}]'
                a(f'v_mfma_f32_16x16x32_bf16 v[{32+4*i}:{35+4*i}], v[{16+4*w}:{19+4*w}], v[{tmp}:{tmp+3}], {c}')
    a('s_nop 7')
    for b in range(2):
        for i in range(8):
            a(f'v_add_f32_dpp v{64+8*b+i}, v{32+4*i+2+b}, v{32+4*i+b} row_ror:8 row_mask:0xf bank_mask:0xf')
    for i in range(16):
        a(f'v_min_u32 v{64+i}, -2, v{64+i}')
    a(f'''
    v_mov_b32 v7, {LDS_C}
    s_mov_b32 s60, {SPIN}
    ''')
    a.label('L_h0_flag1')
    a('''
    ds_read_b32 v8, v7
    s_waitcnt lgkmcnt(0)
    v_cmp_le_u32 vcc, 1, v8
    s_cbranch_vccnz L_h0_flag1_ok
    s_sleep 1
    s_sub_u32 s60, s60, 1
    s_cmp_lg_u32 s60, 0
    s_cbranch_scc1 L_h0_flag1
    ''')
    a.label('L_h0_flag1_ok')
    a('''
    s_mov_b64 exec, 0xff
    buffer_store_dwordx4 v[64:67], v1, s[36:39], s52 offen sc1
    buffer_store_dwordx4 v[68:71], v1, s[36:39], s52 offen offset:128 sc1
    buffer_store_dwordx4 v[72:75], v1, s[36:39], s53 offen sc1
    buffer_store_dwordx4 v[76:79], v1, s[36:39], s53 offen offset:128 sc1
    s_mov_b64 exec, -1
    ''')
    TS(2)
    a(f'''
    s_mov_b32 s60, {SPIN}
    s_bfe_u32 s21, s2, 0x10005     ; b
    s_lshl_b32 s24, s21, 14        ; b*16384
    s_lshl_b32 s25, s20, 12        ; hkv*1024*4
    s_add_u32 s52, s24, s25
    s_add_u32 s53, s52, 32768
    s_add_u32 s54, s52, 65536
    s_add_u32 s55, s52, 98304
    v_and_b32 v6, 7, v0
    v_lshlrev_b32 v6, 4, v6
    v_lshl_add_u32 v6, v4, 7, v6
    v_bfe_u32 v7, v0, 3, 1
    v_lshl_add_u32 v6, v7, 3, v6
    v_add_u32 v6, {LDS_Q}, v6
    v_mov_b32 v7, {LDS_C}
    ''')
    a.label('L_h0_flag2')
    a('''
    ds_read_b32 v8, v7 offset:4
    s_waitcnt lgkmcnt(0)
    v_cmp_eq_u32 vcc, 1, v8
    s_cbranch_vccnz L_h0_flag2_ok
    s_sleep 2
    s_sub_u32 s60, s60, 1
    s_cmp_lg_u32 s60, 0
    s_cbranch_scc1 L_h0_flag2
    ''')
    a.label('L_h0_flag2_ok')
    a(f'''
    s_mov_b32 s60, {SPIN}
    v_and_b32 v12, 3, v0
    v_lshlrev_b32 v12, 6, v12
    s_mov_b64 exec, 0xf
    ''')
    a.label('L_h0_poll')
    a(f'''
    global_load_dword v8, v12, s[16:17] sc1
    s_waitcnt vmcnt(0)
    v_cmp_gt_u32 vcc, 64, v8
    s_cbranch_vccz L_h0_flag_ok
    s_sleep {opt.sleep1}
    s_sub_u32 s60, s60, 1
    s_cmp_lg_u32 s60, 0
    s_cbranch_scc1 L_h0_poll
    ''')
    a.label('L_h0_flag_ok')
    a('s_mov_b64 exec, -1')
    a(f's_mov_b32 s60, {SPIN}')
    TS(3)
    a.label('L_h1_gather')
    for kq in range(4):
        for u in range(4):
            r = 16 + 16*kq + 4*u
            a(f'buffer_load_dwordx4 v[{r}:{r+3}], v1, s[36:39], s{52+kq} offen offset:{1024*u} sc1')
    a('s_waitcnt vmcnt(0)')
    a('v_max3_u32 v8, v16, v17, v18')
    a('v_max3_u32 v9, v19, v20, v21')
    for k in range(22, 78, 4):
        a(f'v_max3_u32 v8, v8, v{k}, v{k+1}')
        a(f'v_max3_u32 v9, v9, v{k+2}, v{k+3}')
    a(f'''
    v_max3_u32 v8, v8, v78, v79
    v_max_u32 v8, v8, v9
    v_cmp_eq_u32 vcc, -1, v8
    s_cbranch_vccz L_h1_got
    s_sleep {opt.sleep1}
    s_sub_u32 s60, s60, 1
    s_cmp_lg_u32 s60, 0
    s_cbranch_scc1 L_h1_gather
    ''')
    a.label('L_h1_got')
    for e in range(16):
        a(f'v_add_f32 v{16+e}, v{16+e}, v{32+e}')
        a(f'v_add_f32 v{48+e}, v{48+e}, v{64+e}')
    for e in range(16):
        a(f'v_add_f32 v{16+e}, v{16+e}, v{48+e}')
    for e in range(8):
        a(f'v_cvt_pk_bf16_f32 v{16+e}, v{16+2*e}, v{17+2*e}')
    for u in range(4):
        a(f'ds_write_b64 v6, v[{16+2*u}:{17+2*u}] offset:{512*u}')
    a('s_waitcnt lgkmcnt(0)')
    TS(4)
    a.label('L_h_notq')
    a('s_setprio 0')
    a('s_barrier                      ; B1')
    srd(a, 28, 12, 0x800000)
    srd(a, 32, 14, 4096)
    a('''
    v_lshlrev_b32 v1, 4, v3
    v_lshl_add_u32 v1, v4, 12, v1  ; 2g*2048 + 16n'
    s_lshl_b32 s24, s48, 16
    s_lshl_b32 s25, s46, 10        ; 512ch*2
    s_add_u32 s24, s24, s25
    s_lshl_b32 s25, s23, 8         ; 128w*2
    s_add_u32 s24, s24, s25
    ''')
    for t_ in range(8):
        a(f's_add_u32 s25, s24, {(8*(t_&3) + (t_>>2))*2048}')
        a(f'buffer_load_dwordx4 v[{64+4*t_}:{67+4*t_}], v1, s[28:31], s25 offen {ld}')
    a(f'''
    v_bfe_u32 v5, v0, 3, 1         ; b
    v_lshl_add_u32 v5, v5, 5, v4   ; 32b + sg4
    v_and_b32 v7, 7, v0            ; pc
    v_lshlrev_b32 v6, 12, v5       ; *4096
    v_lshl_add_u32 v6, v7, 4, v6   ; + pc*16
    v_lshlrev_b32 v7, 6, v5        ; *64 (ML)
    s_lshl_b32 s24, s20, 18        ; 64hkv*4096
    s_lshl_b32 s25, s47, 7
    s_add_u32 s24, s24, s25
    s_lshl_b32 s25, s23, 15        ; 8hw*4096
    s_add_u32 s24, s24, s25
    s_add_u32 s40, s24, {WS_PO:#x}
    s_add_u32 s41, s40, {4*4096}
    s_lshl_b32 s26, s20, 12        ; 64hkv*64
    s_lshr_b32 s25, s47, 2
    s_lshl_b32 s25, s25, 3         ; hh*8
    s_add_u32 s26, s26, s25
    s_lshl_b32 s25, s23, 9         ; 8hw*64
    s_add_u32 s26, s26, s25
    s_add_u32 s26, s26, {WS_ML:#x}
    v_lshlrev_b32 v8, 4, v3
    s_lshl_b32 s25, s23, 9
    s_add_u32 s25, s25, {LDS_C}
    v_add_u32 v8, s25, v8
    v_bfe_u32 v9, v0, 3, 1
    v_lshlrev_b32 v9, 3, v9
    v_add_u32 v9, s25, v9
    v_and_b32 v10, 1, v0
    v_lshlrev_b32 v11, 3, v10
    v_add_u32 v11, {LDS_C}, v11
    v_lshlrev_b32 v10, 7, v10
    v_lshl_add_u32 v10, v4, 5, v10
    v_add_u32 v10, {LDS_C}, v10
    v_lshlrev_b32 v12, 4, v3
    s_lshl_b32 s44, s48, 13
    s_lshl_b32 s25, s46, 11
    s_add_u32 s44, s44, s25
    s_lshl_b32 s25, s23, 9
    s_add_u32 s44, s44, s25
    s_add_u32 s44, s44, {WS_OP:#x}
    s_add_u32 s45, s44, 4096
    s_mov_b64 s[50:51], -1
    s_mov_b64 s[52:53], -1
    s_mov_b64 s[54:55], -1
    s_mov_b64 s[56:57], -1
    s_mov_b32 s60, {SPIN}
    s_waitcnt vmcnt(0)
    ''')
    for q in range(4):
        for hi in range(2):
            perm_pair(a, 96 + 4*(2*q+hi), 64, q, hi)
    def issue2(base):
        for k in range(2):
            a(f'buffer_load_dwordx4 v[{base+4*k}:{base+3+4*k}], v6, s[36:39], s{40+k} offen sc1')
            a(f'buffer_load_dwordx2 v[{base+8+2*k}:{base+9+2*k}], v7, s[36:39], s26 offen offset:{256*k} sc1')
    chk2 = pingpong(a, 's2', issue2, 12, 4, 160, 176, 28, opt)
    a(f'''
    v_and_b32 v13, 7, v0
    v_lshlrev_b32 v13, 3, v13      ; (l&7)*8
    v_add_u32 v14, {LDS_ML}, v13
    s_lshl_b32 s42, s2, 6
    s_add_u32 s42, s42, {WS_ML:#x}
    ''')
    a(f'''
    s_cmp_lg_u32 s23, 2
    s_cbranch_scc1 L_no_tk
    s_setprio 3
    s_lshr_b32 s24, s2, 5          ; 2*hkv + b
    s_lshl_b32 s24, s24, 12
    s_add_u32 s24, s24, {WS_TK:#x}
    v_mov_b32 v21, s24
    v_mov_b32 v22, 1
    v_mov_b32 v23, {LDS_PW}
    v_mov_b32 v24, {LDS_MB}
    s_mov_b32 s61, 0
    s_mov_b32 s59, {4*SPIN}
    s_mov_b64 exec, 1
    ''')
    a.label('L_tk')
    a(f'''
    ds_read_b32 v20, v23
    s_waitcnt lgkmcnt(0)
    v_readfirstlane_b32 s24, v20
    s_cmp_gt_u32 s24, s61
    s_cbranch_scc1 L_tk_go
    s_sleep 1
    s_sub_u32 s59, s59, 1
    s_cmp_lg_u32 s59, 0
    s_cbranch_scc1 L_tk
    s_branch L_tk_end
    ''')
    a.label('L_tk_go')
    a(f'''
    global_atomic_add v20, v21, v22, s[18:19] sc0 sc1
    s_add_u32 s61, s61, 1
    s_waitcnt vmcnt(0)
    ds_write_b32 v24, v20
    v_add_u32 v24, 4, v24
    v_readfirstlane_b32 s24, v20
    s_cmp_lt_u32 s24, {NT}
    s_cbranch_scc1 L_tk
    ''')
    a.label('L_tk_end')
    a('s_mov_b64 exec, -1')
    a('s_waitcnt lgkmcnt(0)')
    a.label('L_no_tk')
    a('s_barrier                      ; B2')
    a('s_cmp_lg_u32 s23, 3')
    a('s_cbranch_scc1 L_no_ml')
    for w in range(4):
        a(f'ds_read_b64 v[{40+2*w}:{41+2*w}], v14 offset:{64*w}')
    a('''
    s_waitcnt lgkmcnt(0)
    v_max_f32 v32, v40, v42
    v_max3_f32 v32, v32, v44, v46   ; M
    v_sub_f32 v40, v40, v32
    v_sub_f32 v42, v42, v32
    v_sub_f32 v44, v44, v32
    v_sub_f32 v46, v46, v32
    v_exp_f32 v40, v40
    v_exp_f32 v42, v42
    v_exp_f32 v44, v44
    v_exp_f32 v46, v46
    v_min_u32 v32, -2, v32
    v_mul_f32 v33, v40, v41
    v_fmac_f32 v33, v42, v43
    v_fmac_f32 v33, v44, v45
    v_fmac_f32 v33, v46, v47        ; L
    v_min_u32 v33, -2, v33
    s_mov_b64 exec, 0xff
    buffer_store_dwordx2 v[32:33], v13, s[36:39], s42 offen sc1
    s_mov_b64 exec, -1
    ''')
    a.label('L_no_ml')
    a('s_barrier                      ; B2b')
    pingpong_loop(a, 's2', issue2, 12, 4, 160, 176, chk2, opt)
    TS(5)
    a('v_max_f32 v32, v168, v170')
    a('s_nop 0')
    xlane(a, 'v_max_f32', 32, 33, 16)
    a('s_nop 0')
    xlane(a, 'v_max_f32', 32, 33, 32)
    a('''
    v_sub_f32 v24, v168, v32
    v_sub_f32 v26, v170, v32
    v_exp_f32 v24, v24
    v_exp_f32 v26, v26
    s_nop 0
    v_mul_f32 v33, v24, v169
    ''')
    for e in range(4):
        a(f'v_mul_f32 v{36+e}, v24, v{160+e}')
    a('v_fmac_f32 v33, v26, v171')
    for e in range(4):
        a(f'v_fmac_f32 v{36+e}, v26, v{164+e}')
    vals = [33, 36, 37, 38, 39]
    for sw in ('v_permlane16_swap_b32', 'v_permlane32_swap_b32'):
        for i, v in enumerate(vals):
            a(f'v_mov_b32 v{40+i}, v{v}')
        a('s_nop 0')
        for i, v in enumerate(vals):
            a(f'{sw} v{v}, v{40+i}')
        a('s_nop 0')
        for i, v in enumerate(vals):
            a(f'v_add_f32 v{v}, v{v}, v{40+i}')
    a('''
    s_mov_b64 exec, 0xffff
    ds_write_b128 v8, v[36:39]
    s_mov_b64 exec, 0x101
    ds_write_b64 v9, v[32:33] offset:256
    s_mov_b64 exec, -1
    s_waitcnt lgkmcnt(0)
    s_barrier
    ''')
    for w in range(4):
        a(f'ds_read_b64 v[{16+2*w}:{17+2*w}], v11 offset:{512*w+256}')
    for w in range(4):
        a(f'ds_read_b128 v[{24+8*w}:{27+8*w}], v10 offset:{512*w}')
        a(f'ds_read_b128 v[{28+8*w}:{31+8*w}], v10 offset:{512*w+16}')
    a('''
    s_waitcnt lgkmcnt(8)
    v_max_f32 v56, v16, v18
    v_max3_f32 v56, v56, v20, v22
    v_sub_f32 v16, v16, v56
    v_sub_f32 v18, v18, v56
    v_sub_f32 v20, v20, v56
    v_sub_f32 v22, v22, v56
    v_exp_f32 v16, v16
    v_exp_f32 v18, v18
    v_exp_f32 v20, v20
    v_exp_f32 v22, v22
    s_nop 0
    v_mul_f32 v57, v16, v17
    v_fmac_f32 v57, v18, v19
    v_fmac_f32 v57, v20, v21
    v_fmac_f32 v57, v22, v23
    v_rcp_f32 v57, v57
    s_nop 0
    v_mul_f32 v16, v16, v57
    v_mul_f32 v18, v18, v57
    v_mul_f32 v20, v20, v57
    v_mul_f32 v22, v22, v57
    s_waitcnt lgkmcnt(0)
    ''')
    for e in range(8):
        a(f'v_mul_f32 v{24+e}, v16, v{24+e}')
    for w in range(1, 4):
        for e in range(8):
            a(f'v_fmac_f32 v{24+e}, v{16+2*w}, v{24+8*w+e}')
    for e in range(4):
        a(f'v_cvt_pk_bf16_f32 v{60+e}, v{24+2*e}, v{25+2*e}')
    a('s_nop 1')
    for i in range(8):
        a(f'v_mfma_f32_16x16x32_bf16 v[{128+4*i}:{131+4*i}], v[60:63], v[{96+4*i}:{99+4*i}], 0')
    a('s_nop 1')
    for i in range(8):
        for b in range(2):
            a(f'v_min_u32 v{16+8*b+i}, -2, v{128+4*i+b}')
    a('''
    s_mov_b64 exec, 0xffff
    buffer_store_dwordx4 v[16:19], v12, s[36:39], s44 offen sc1
    buffer_store_dwordx4 v[20:23], v12, s[36:39], s44 offen offset:256 sc1
    buffer_store_dwordx4 v[24:27], v12, s[36:39], s45 offen sc1
    buffer_store_dwordx4 v[28:31], v12, s[36:39], s45 offen offset:256 sc1
    s_mov_b64 exec, -1
    ''')
    TS(6)
    a('s_cmp_ge_u32 s2, 64')
    a('s_cbranch_scc1 L_h_end')
    a(f'''
    v_lshrrev_b32 v1, 3, v0        ; pg
    v_and_b32 v2, 7, v0            ; pc
    v_lshlrev_b32 v1, 13, v1
    v_lshl_add_u32 v1, v2, 4, v1
    s_lshl_b32 s24, s2, 7
    s_lshl_b32 s25, s23, 18        ; 32hw*8192
    s_add_u32 s24, s24, s25
    s_add_u32 s40, s24, {WS_OP:#x}
    s_add_u32 s41, s40, {8*8192}
    s_add_u32 s42, s40, {16*8192}
    s_add_u32 s43, s40, {24*8192}
    v_lshlrev_b32 v5, 4, v2
    v_add_u32 v5, {LDS_C+2048}, v5
    s_lshl_b32 s25, s23, 7
    v_add_u32 v6, s25, v5
    s_lshr_b32 s24, s2, 2
    s_lshl_b32 s24, s24, 8         ; b*2048 + region*256
    s_and_b32 s25, s2, 1
    s_lshl_b32 s25, s25, 7
    s_add_u32 s24, s24, s25
    s_and_b32 s25, s2, 2
    s_lshl_b32 s25, s25, 2
    s_add_u32 s24, s24, s25
    v_lshlrev_b32 v7, 4, v2
    ''')
    def issue3(base):
        for u in range(4):
            a(f'buffer_load_dwordx4 v[{base+4*u}:{base+3+4*u}], v1, s[36:39], s{40+u} offen sc1')
    chk3 = pingpong(a, 's3', issue3, 16, 4, 192, 208, 48, opt)
    pingpong_loop(a, 's3', issue3, 16, 4, 192, 208, chk3, opt)
    for e in range(4):
        a(f'v_add_f32 v{32+e}, v{192+e}, v{196+e}')
        a(f'v_add_f32 v{40+e}, v{200+e}, v{204+e}')
    for e in range(4):
        a(f'v_add_f32 v{32+e}, v{32+e}, v{40+e}')
    a('s_nop 1')
    for e in range(4):
        a(f'v_add_f32_dpp v{32+e}, v{32+e}, v{32+e} row_ror:8 row_mask:0xf bank_mask:0xf')
    for sw in ('v_permlane16_swap_b32', 'v_permlane32_swap_b32'):
        for e in range(4):
            a(f'v_mov_b32 v{36+e}, v{32+e}')
        a('s_nop 0')
        for e in range(4):
            a(f'{sw} v{32+e}, v{36+e}')
        a('s_nop 0')
        for e in range(4):
            a(f'v_add_f32 v{32+e}, v{32+e}, v{36+e}')
    a('''
    s_mov_b64 exec, 0xff
    ds_write_b128 v6, v[32:35]
    s_waitcnt lgkmcnt(0)
    s_barrier                      ; B4
    s_cmp_lg_u32 s23, 0
    s_cbranch_scc1 L_h_end2
    ''')
    for w in range(4):
        a(f'ds_read_b128 v[{32+4*w}:{35+4*w}], v5 offset:{128*w}')
    a('s_waitcnt lgkmcnt(0)')
    for e in range(4):
        a(f'v_add_f32 v{32+e}, v{32+e}, v{36+e}')
        a(f'v_add_f32 v{40+e}, v{40+e}, v{44+e}')
    for e in range(4):
        a(f'v_add_f32 v{32+e}, v{32+e}, v{40+e}')
    a('''
    v_cvt_pk_bf16_f32 v32, v32, v33
    v_cvt_pk_bf16_f32 v33, v34, v35
    buffer_store_dwordx2 v[32:33], v7, s[32:35], s24 offen
    ''')
    a.label('L_h_end2')
    a('s_mov_b64 exec, -1')
    a.label('L_h_end')
    TS(7)
    TS_flush(8)
    a.label('L_done')
    a('s_endpgm')
    a.raw('.section .rodata,"a"')
    a.raw('.p2align 6')
    a.raw(f'.amdhsa_kernel {NAME}')
    a.raw('  .amdhsa_next_free_vgpr 256')
    a.raw('  .amdhsa_next_free_sgpr 96')
    a.raw('  .amdhsa_accum_offset 256')
    a.raw('  .amdhsa_group_segment_fixed_size 0')
    a.raw('  .amdhsa_kernarg_size 64')
    a.raw('  .amdhsa_user_sgpr_count 2')
    a.raw('  .amdhsa_user_sgpr_kernarg_segment_ptr 1')
    a.raw('  .amdhsa_system_sgpr_workgroup_id_x 1')
    a.raw('.end_amdhsa_kernel')
    return a.text().replace('LOOKAHEAD', str(opt.la)).replace('NS_TILES', str(2*opt.nsb))

if __name__ == '__main__':
    p = argparse.ArgumentParser()
    p.add_argument('out')
    p.add_argument('--ldflag', default='nt')
    p.add_argument('--depth', type=int, default=6)
    p.add_argument('--ts', action='store_true')
    p.add_argument('--nsb', type=int, default=6)
    p.add_argument('--la', type=int, default=1)
    p.add_argument('--pp_lsleep', type=int, default=0)
    p.add_argument('--touch', type=int, default=0)
    p.add_argument('--pp_sleep', type=int, default=5)
    p.add_argument('--n1', type=int, default=24)
    p.add_argument('--depth1', type=int, default=6)
    p.add_argument('--switch', type=int, default=32)
    p.add_argument('--n0', type=int, default=4)
    p.add_argument('--b0w', type=int, default=0)
    p.add_argument('--noq', action='store_true')
    p.add_argument('--sleep1', type=int, default=8)
    p.add_argument('--sleep2', type=int, default=4)
    opt = p.parse_args()
    open(opt.out, 'w').write(gen(opt))
```
